```python
import torch

def _softmax(x, axis=-1):
    return torch.softmax(x, dim=axis)

def _gelu(x):
    return torch.nn.functional.gelu(x, approximate='tanh')

def _silu(x):
    return torch.nn.functional.silu(x)

def _sigmoid(x):
    return torch.sigmoid(x)

def _layernorm(x, axis=-1, eps=1e-05):
    m = x.mean(dim=axis, keepdim=True)
    v = x.var(dim=axis, keepdim=True, unbiased=False)
    return (x - m) / torch.sqrt(v + eps)

def _scatter_add(tgt, idx, src, axis=0):
    return tgt.clone().index_add_(axis, idx, src)

def _segment_sum(src, seg, n):
    out = torch.zeros((n,) + src.shape[1:], dtype=src.dtype)
    return out.index_add_(0, seg, src)

def _pad(x, pw):
    flat = tuple((v for pair in reversed(pw) for v in pair))
    return torch.nn.functional.pad(x, flat)
kernel_name = 'standalone__kv_cache_quant_pre_rope_vs_post_rope__decode'

def setup_inputs():

    _w = lambda a: (lambda t: t.to(torch.bfloat16) if t.is_floating_point() else t)(torch.as_tensor(a))
    B, Sq, Skv = (4, 1, 8192)
    H, Dh0 = (4, 128)
    G = 64 if 64 > 0 else Dh0
    G = max(2, G // 2 * 2)
    Dh = max(G, Dh0 // G * G)
    Skv = max(Skv, Sq)
    ng = Dh // G
    bits = 2 if 2 > 1 else 4
    bits = max(2, min(8, bits))
    qmax = (1 << bits) - 1
    half = Dh // 2
    inv = 1.0 / 10000.0 ** (torch.arange(half) / max(1, half))
    ang_k = torch.arange(Skv)[:, None] * inv[None, :]
    ang_q = torch.arange(Skv - Sq, Skv)[:, None] * inv[None, :]
    kc = torch.cat([torch.cos(ang_k), torch.cos(ang_k)], dim=-1)
    ks = torch.cat([torch.sin(ang_k), torch.sin(ang_k)], dim=-1)
    qc = torch.cat([torch.cos(ang_q), torch.cos(ang_q)], dim=-1)
    qs = torch.cat([torch.sin(ang_q), torch.sin(ang_q)], dim=-1)
    qk_i = torch.randint(0, qmax + 1, (B, H, Skv, Dh)).to(torch.int32)
    qv_i = torch.randint(0, qmax + 1, (B, H, Skv, Dh)).to(torch.int32)
    ksc = torch.abs((lambda *s: torch.randn(*s, dtype=torch.bfloat16) * 0.4)(B, H, Skv, ng)) * 0.1 + 0.01
    kzp = torch.full((B, H, Skv, ng), qmax / 2.0)
    vsc = torch.abs((lambda *s: torch.randn(*s, dtype=torch.bfloat16) * 0.4)(B, H, Skv, ng)) * 0.1 + 0.01
    vzp = torch.full((B, H, Skv, ng), qmax / 2.0)
    return {'q': _w((lambda *s: torch.randn(*s, dtype=torch.bfloat16) * 12.8)(B, H, Sq, Dh) * 0.5), 'qk': _w(qk_i), 'k_scales': _w(ksc), 'k_zeros': _w(kzp), 'qv': _w(qv_i), 'v_scales': _w(vsc), 'v_zeros': _w(vzp), 'q_cos': _w(qc), 'q_sin': _w(qs), 'k_cos': _w(kc), 'k_sin': _w(ks)}

def reference(q, qk, k_scales, k_zeros, qv, v_scales, v_zeros, q_cos, q_sin, k_cos, k_sin):
    B, H, Sq, Dh = q.shape
    ng = k_scales.shape[-1]
    G = Dh // ng
    half = Dh // 2
    ks = (lambda x, n, axis: torch.repeat_interleave(x, n, dim=axis))(k_scales, G, axis=-1)
    kz = (lambda x, n, axis: torch.repeat_interleave(x, n, dim=axis))(k_zeros, G, axis=-1)
    k = ((lambda x, dt: x.to(dt))(qk, q.dtype) - kz) * ks
    vs = (lambda x, n, axis: torch.repeat_interleave(x, n, dim=axis))(v_scales, G, axis=-1)
    vz = (lambda x, n, axis: torch.repeat_interleave(x, n, dim=axis))(v_zeros, G, axis=-1)
    v = ((lambda x, dt: x.to(dt))(qv, q.dtype) - vz) * vs
    k1 = k[..., :half].clone()
    k2 = k[..., half:].clone()
    krh = torch.concatenate([-k2, k1], axis=-1)
    kr = k * k_cos[None, None, :, :] + krh * k_sin[None, None, :, :]
    q1 = q[..., :half].clone()
    q2 = q[..., half:].clone()
    qrh = torch.concatenate([-q2, q1], axis=-1)
    qr = q * q_cos[None, None, :, :] + qrh * q_sin[None, None, :, :]
    logits = torch.einsum('bhqd,bhkd->bhqk', qr, kr) * float(Dh) ** (-0.5)
    attn = _softmax(logits, axis=-1)
    out = torch.einsum('bhqk,bhkd->bhqd', attn, v)
    return out
```

```python
import re
KNAME='standalone__kv_cache_quant_pre_rope_vs_post_rope__decode'

def regs_of(tok):
    tok=tok.strip()
    neg=tok.lstrip('-')
    if neg.startswith('abs(') : neg=neg[4:-1]
    if neg.startswith('|'): neg=neg.strip('|')
    m=re.fullmatch(r'([vsa])(\d+)',neg)
    if m: return [(m.group(1),int(m.group(2)))]
    m=re.fullmatch(r'([vsa])\[(\d+):(\d+)\]',neg)
    if m: return [(m.group(1),k) for k in range(int(m.group(2)),int(m.group(3))+1)]
    if neg=='vcc': return [('s','vcc_lo'),('s','vcc_hi')]
    if neg=='exec': return [('s','exec_lo'),('s','exec_hi')]
    if neg=='m0': return [('s','m0')]
    return []

TRANS=('v_exp_f32','v_log_f32','v_rcp_f32','v_rsq_f32','v_sqrt_f32','v_sin_f32','v_cos_f32','v_rcp_iflag_f32')
class Ins:
    def __init__(s,text):
        s.text=text
        t=text.split(';')[0].strip()
        s.is_label=t.endswith(':')
        s.is_dir=t.startswith('.') or t==''
        s.op=''; s.dst=[]; s.src=[]; s.ws=1
        if s.is_label or s.is_dir: s.ws=0; return
        parts=t.split(None,1)
        s.op=parts[0]
        rest=parts[1] if len(parts)>1 else ''
        ops=[];depth=0;cur=''
        for ch in rest:
            if ch=='[':depth+=1
            if ch==']':depth-=1
            if ch==',' and depth==0: ops.append(cur);cur=''
            else: cur+=ch
        if cur.strip(): ops.append(cur)
        ops2=[]
        for o in ops:
            o=o.strip()
            ops2.append(o.split()[0] if o else o)
        s.mods=rest
        s.ops=ops2
        op=s.op
        s.valu=op.startswith('v_')
        s.dpp=('_dpp' in op) or ('row_' in rest) or ('quad_perm' in rest)
        s.trans=any(op.startswith(x) for x in TRANS)
        s.dot=op.startswith('v_dot')
        s.vmem=op.startswith('buffer_') or op.startswith('global_')
        s.ds=op.startswith('ds_')
        s.lds_dma=s.vmem and re.search(r'\blds\b',rest) is not None
        s.lane=op.startswith('v_readlane') or op.startswith('v_readfirstlane') or op.startswith('v_writelane')
        s.perml=op.startswith('v_permlane')
        if op=='s_nop': s.ws=int(ops2[0],0)+1; return
        R=[regs_of(o) for o in ops2]
        if s.valu:
            if op.startswith('v_cmp'):
                s.dst=R[0]; s.src=sum(R[1:],[])
                if op.startswith('v_cmpx'): s.dst+= [('s','exec_lo'),('s','exec_hi')]
            elif s.perml:
                s.dst=R[0]+R[1]; s.src=R[0]+R[1]
            elif op.startswith('v_add_co') or op.startswith('v_sub_co') or op.startswith('v_addc_co'):
                s.dst=R[0]+R[1]; s.src=sum(R[2:],[])
            else:
                s.dst=R[0]; s.src=sum(R[1:],[])
                if op.startswith('v_fmac') or op.startswith('v_dot2c') or op.startswith('v_pk_fmac') or op.startswith('v_writelane'): s.src+=R[0]
                if s.dpp: s.src+=R[0]
                if op.startswith('v_cndmask') and len(ops2)==3: s.src+=[('s','vcc_lo'),('s','vcc_hi')]
        elif s.vmem:
            if s.lds_dma:
                s.src=sum(R,[])+[('s','m0')]
            elif '_load' in op:
                s.dst=R[0]; s.src=sum(R[1:],[])
            elif '_store' in op:
                s.src=sum(R,[]); s.store_data=R[0] if op.startswith('buffer') else R[1]
            elif '_atomic' in op:
                s.src=sum(R,[])
                if 'sc0' in rest: s.dst=R[0] if op.startswith('buffer') else R[0]
        elif s.ds:
            if op.startswith('ds_read') or op.startswith('ds_bpermute') or op.startswith('ds_swizzle') or op.startswith('ds_permute'):
                s.dst=R[0]; s.src=sum(R[1:],[])
            else: s.src=sum(R,[])
        elif op.startswith('s_'):
            if op.startswith('s_cmp') or op.startswith('s_waitcnt') or op.startswith('s_cbranch') or op.startswith('s_branch') or op in('s_barrier','s_endpgm','s_sleep','s_setprio'):
                s.src=sum(R,[])
            else:
                s.dst=R[0] if R else []; s.src=sum(R[1:],[])
                if 'saveexec' in op: s.dst+=[('s','exec_lo'),('s','exec_hi')]

def need(prev,cur,dist):
    n=0
    pd=set(prev.dst)
    if not prev.op: return 0
    cv=set(cur.src); cd=set(cur.dst)
    vd={r for r in pd if r[0] in 'va'}; sd={r for r in pd if r[0]=='s'}
    if prev.valu:
        if cur.valu and cur.dpp and (vd&cv): n=max(n,2)
        if cur.valu and cur.dpp and ('s','exec_lo') in sd: n=max(n,5)
        if prev.trans and cur.valu and not cur.trans and (vd&cv): n=max(n,1)
        if prev.trans and (cur.vmem or cur.ds) and (vd&cv): n=max(n,1)
        if prev.dot and (cur.valu or cur.vmem or cur.ds) and (vd&(cv|cd)):
            if not (cur.op==prev.op and not (vd & set(sum([regs_of(o) for o in cur.ops[1:3]],[])))): n=max(n,3)
        if cur.lane and (vd&cv): n=max(n,1)
        if cur.perml and (vd&cv): n=max(n,2)
        if cur.valu and (sd&cv):
            n=max(n,4 if cur.lane else 2)
        if cur.vmem and (sd&cv): n=max(n,5)
        if cur.op.startswith('s_') and not cur.op.startswith('s_nop') and (sd&cv): n=max(n,4)
        if cur.op.startswith('s_cbranch_vcc') and (('s','vcc_lo') in sd): n=max(n,5)
        if cur.op.startswith('s_cbranch_exec') and (('s','exec_lo') in sd): n=max(n,5)
    if prev.op.startswith('s_') and ('s','m0') in sd and (cur.lds_dma): n=max(n,1)
    if prev.vmem and hasattr(prev,'store_data') and len(prev.store_data)>=3 and cur.valu and (set(prev.store_data)&cd): n=max(n,2)
    if prev.vmem and hasattr(prev,'store_data') and len(prev.store_data)>=3 and (cur.vmem or cur.ds) and (set(prev.store_data)&cd): n=max(n,1)
    return n

def fix_hazards(lines, verbose=False):
    out=[]; hist=[]
    nn=0
    for text in lines:
        for l in text.split('\n'):
            ins=Ins(l)
            if ins.is_label or ins.is_dir:
                out.append(l); continue
            req=0; d=0
            for p in reversed(hist):
                if d>=6: break
                k=need(p,ins,d)
                if k>d: req=max(req,k-d)
                d+=p.ws
            if req>0:
                out.append('s_nop %d'%(req-1)); hist.append(Ins('s_nop %d'%(req-1))); nn+=1
                if verbose: print('pad',req,'before',l)
            out.append(l); hist.append(ins)
    return out,nn

HDR='''; @launch grid=(%d,1,1) block=(%d,1,1) lds=%d
.amdgcn_target "amdgcn-amd-amdhsa--gfx950"
.text
.globl KN_kernel
.p2align 8
.type KN_kernel,@function
KN_kernel:'''.replace('KN',KNAME)
FTR='''.section .rodata,"a"
.p2align 6
.amdhsa_kernel KN_kernel
  .amdhsa_next_free_vgpr %d
  .amdhsa_next_free_sgpr %d
  .amdhsa_accum_offset %d
  .amdhsa_group_segment_fixed_size 0
  .amdhsa_kernarg_size 112
  .amdhsa_user_sgpr_count 2
  .amdhsa_user_sgpr_kernarg_segment_ptr 1
  .amdhsa_system_sgpr_workgroup_id_x 1
.end_amdhsa_kernel
'''.replace('KN',KNAME)
```

```python
from asmlib import *
import math, sys

REC=2304

def gen(POL='nt', NS=16, CPOL='', SPOL='', R=16, gmap='yx', dbg=False):
    o=[]; a=o.append
    NT=16
    sK,sV,sC,sS,sQ,sKS,sKZ,sVS,sVZ,sQC,sQS,sO,sD,sW=4,8,12,16,20,24,28,32,36,40,44,48,52,56
    sw,sb,sg,soA,soB,sT,sT2,sel0,sel1=88,89,90,91,92,93,94,95,96
    def srd(n): return 's[%d:%d]'%(n,n+3)
    nv=[1]
    def V(n=1,al=1):
        x=(nv[0]+al-1)//al*al; nv[0]=x+n; return x
    def vr(x,n=1): return 'v%d'%x if n==1 else 'v[%d:%d]'%(x,x+n-1)
    vKV=V(); vC=V(); vT0=V(); vT1=V(); vI=V(); vRr=V(); vT2=V()
    P1=V(4,2); P2=V(4,2)
    Cb=V(8,2)
    X=V(8,2)
    zk0=V();zk1=V();sk0=V();sk1=V();zv0=V();zv1=V();sv0=V();sv1=V()
    A0=V();A1=V();UU=V();LOG=V()
    acc=V(8,4)
    a0=V();a1=V();mM=V(2,2);c0=V();c1=V()
    ring=V(8*NS,4)
    nring_end=nv[0]
    issued=[]
    def vm(text,tag): a(text); issued.append(tag)
    def wait_vm(tag):
        idx=max(i for i,t in enumerate(issued) if t==tag)
        n=len(issued)-1-idx
        assert n<=63
        a('s_waitcnt vmcnt(%d)'%n)
    a('s_load_dwordx16 s[60:75], s[0:1], 0')
    a('s_load_dwordx8 s[76:83], s[0:1], 64')
    a('s_load_dwordx4 s[84:87], s[0:1], 96')
    a('s_cmp_ge_u32 s2, 256')
    a('s_cbranch_scc1 L_end')
    a('v_lshrrev_b32 %s, 6, v0'%vr(vT0))
    a('v_and_b32 %s, 15, v0'%vr(vI))
    a('v_readfirstlane_b32 s%d, %s'%(sw,vr(vT0)))
    a('v_bfe_u32 %s, v0, 4, 2'%vr(vRr))
    a('s_and_b32 s%d, s2, 7'%sT)
    a('s_bfe_u32 s%d, s2, 0x20003'%sb)
    a('s_lshr_b32 s%d, s2, 5'%sT2)
    if gmap=='yx':
        a('s_lshl_b32 s%d, s%d, 3'%(sT2,sT2)); a('s_add_u32 s%d, s%d, s%d'%(sg,sT,sT2))
    else:
        a('s_lshl_b32 s%d, s%d, 3'%(sT,sT)); a('s_add_u32 s%d, s%d, s%d'%(sg,sT,sT2))
    sizes={sK:64<<20,sV:64<<20,sC:2<<20,sS:2<<20,sQ:4096,sKS:512<<10,sKZ:512<<10,sVS:512<<10,sVZ:512<<10,sQC:256,sQS:256,sO:4096,sD:256,sW:256*REC}
    for n,sz in sizes.items():
        a('s_mov_b32 s%d, 0x%x'%(n+2,sz)); a('s_mov_b32 s%d, 0x20000'%(n+3))
    a('v_lshlrev_b32 %s, 4, %s'%(vr(vT1),vr(vI)))
    a('v_lshl_add_u32 %s, %s, 22, %s'%(vr(vKV),vr(vRr),vr(vT1)))
    vQo,vQc,vSo,vD=ring+8*NS-4,ring+8*NS-3,ring+8*NS-2,ring+8*NS-1
    vQo,vQc,vSo,vD=X,X+1,X+2,X+3
    a('v_lshlrev_b32 %s, 3, %s'%(vr(vQc),vr(vI)))
    a('v_lshl_add_u32 %s, %s, 8, %s'%(vr(vQo),vr(vRr),vr(vQc)))
    a('v_lshlrev_b32 %s, 2, %s'%(vr(vSo),vr(vI)))
    a('v_lshl_add_u32 %s, %s, 15, %s'%(vr(vSo),vr(vRr),vr(vSo)))
    a('v_and_b32 %s, 63, v0'%vr(vD))
    a('v_lshlrev_b32 %s, 4, %s'%(vr(vD),vr(vD)))
    sTok=97
    a('s_lshl_b32 s%d, s%d, 7'%(sTok,sg))
    a('s_lshl_b32 s%d, s%d, 4'%(sT,sw))
    a('s_add_u32 s%d, s%d, s%d'%(sTok,sTok,sT))
    a('s_lshl_b32 s%d, s%d, 24'%(soA,sb))
    a('s_lshl_b32 s%d, s%d, 9'%(sT,sTok))
    a('s_add_u32 s%d, s%d, s%d'%(soA,soA,sT))
    a('s_add_u32 s%d, s%d, 4096'%(soB,soA))
    sQo,sSo,sDo,sLb=98,99,100,101
    a('s_lshl_b32 s%d, s%d, 10'%(sQo,sb))
    a('s_lshl_b32 s%d, s%d, 17'%(sSo,sb))
    a('s_lshl_b32 s%d, s%d, 2'%(sT,sTok))
    a('s_add_u32 s%d, s%d, s%d'%(sSo,sSo,sT))
    a('s_lshl_b32 s%d, s%d, 8'%(sDo,sTok))
    a('s_lshl_b32 s%d, s%d, 13'%(sLb,sw))
    a('v_add_u32 %s, s%d, %s'%(vr(vC),sLb,vr(vQc)))
    a('s_mov_b32 s%d, 0x05040100'%sel0)
    a('s_mov_b32 s%d, 0x07060302'%sel1)
    a('s_mov_b32 m0, s%d'%sLb)
    a('s_waitcnt lgkmcnt(0)')
    mv={sQ:60,sK:62,sKS:64,sKZ:66,sV:68,sVS:70,sVZ:72,sQC:74,sQS:76,sC:78,sS:80,sO:82,sD:84,sW:86}
    for n in (sQ,sQC,sQS,sKS,sKZ,sVS,sVZ,sC,sS,sK,sV,sO,sD,sW):
        a('s_mov_b64 s[%d:%d], s[%d:%d]'%(n,n+1,mv[n],mv[n]+1))
    vm('buffer_load_dwordx2 %s, %s, %s, s%d offen'%(vr(P1,2),vr(vQo),srd(sQ),sQo),'q')
    vm('buffer_load_dwordx2 %s, %s, %s, s%d offen offset:128'%(vr(P1+2,2),vr(vQo),srd(sQ),sQo),'q')
    vm('buffer_load_dwordx2 %s, %s, %s, 0 offen'%(vr(Cb,2),vr(vQc),srd(sQC)),'q')
    vm('buffer_load_dwordx2 %s, %s, %s, 0 offen offset:128'%(vr(Cb+2,2),vr(vQc),srd(sQC)),'q')
    vm('buffer_load_dwordx2 %s, %s, %s, 0 offen'%(vr(Cb+4,2),vr(vQc),srd(sQS)),'q')
    vm('buffer_load_dwordx2 %s, %s, %s, 0 offen offset:128'%(vr(Cb+6,2),vr(vQc),srd(sQS)),'q')
    vm('buffer_load_dword %s, %s, %s, s%d offen %s'%(vr(sk1),vr(vSo),srd(sKS),sSo,SPOL),'sc')
    vm('buffer_load_dword %s, %s, %s, s%d offen %s'%(vr(zk1),vr(vSo),srd(sKZ),sSo,SPOL),'sc')
    vm('buffer_load_dword %s, %s, %s, s%d offen %s'%(vr(sv1),vr(vSo),srd(sVS),sSo,SPOL),'sc')
    vm('buffer_load_dword %s, %s, %s, s%d offen %s'%(vr(zv1),vr(vSo),srd(sVZ),sSo,SPOL),'sc')
    for k in range(4):
        vm('buffer_load_dwordx4 %s, %s, s%d offen offset:%d %s lds'%(vr(vD),srd(sC),sDo,k*1024,CPOL),'dma')
    a('s_add_u32 s%d, s%d, 4096'%(sT,sLb))
    a('s_mov_b32 m0, s%d'%sT)
    for k in range(4):
        vm('buffer_load_dwordx4 %s, %s, s%d offen offset:%d %s lds'%(vr(vD),srd(sS),sDo,k*1024,CPOL),'dma')
    NL=2*NT
    def issue(j):
        slot=ring+8*(j%NS)
        s=j%NT; base=sK if j<NT else sV
        so=soA if s<8 else soB
        off=(s%8)*512
        tag='L%d'%j
        vm('buffer_load_dwordx4 %s, %s, %s, s%d offen offset:%d %s'%(vr(slot,4),vr(vKV),srd(base),so,off,POL),tag)
        vm('buffer_load_dwordx4 %s, %s, %s, s%d offen offset:%d %s'%(vr(slot+4,4),vr(vKV),srd(base),so,off+256,POL),tag)
    for j in range(min(NS,NL)): issue(j)
    wait_vm('q')
    t=[acc+k for k in range(8)]+[A0,A1,UU,LOG,a0,a1,c0,c1]
    ql,qh,cl,ch,sl,sh,t1,t2,t3,t4=t[0:10]
    res=[X+4,X+5,X+6,X+7, mM,mM+1, t[10],t[11]]
    def unpack(dst,src,j):
        r=src+(j>>1)
        if j&1: a('v_and_b32 %s, 0xffff0000, %s'%(vr(dst),vr(r)))
        else:   a('v_lshlrev_b32 %s, 16, %s'%(vr(dst),vr(r)))
    for j in range(4):
        unpack(ql,P1,j); unpack(qh,P1+2,j); unpack(cl,Cb,j); unpack(ch,Cb+2,j); unpack(sl,Cb+4,j); unpack(sh,Cb+6,j)
        a('v_mul_f32 %s, %s, %s'%(vr(t1),vr(ql),vr(cl)))
        a('v_mul_f32 %s, %s, %s'%(vr(t2),vr(qh),vr(sl)))
        a('v_mul_f32 %s, %s, %s'%(vr(t3),vr(qh),vr(ch)))
        a('v_mul_f32 %s, %s, %s'%(vr(t4),vr(ql),vr(sh)))
        a('v_cvt_pk_bf16_f32 %s, %s, %s'%(vr(t1),vr(t1),vr(t2)))
        a('v_cvt_pk_bf16_f32 %s, %s, %s'%(vr(t3),vr(t3),vr(t4)))
        a('v_and_b32 %s, 0xffff0000, %s'%(vr(t2),vr(t1)))
        a('v_lshlrev_b32 %s, 16, %s'%(vr(t1),vr(t1)))
        a('v_and_b32 %s, 0xffff0000, %s'%(vr(t4),vr(t3)))
        a('v_lshlrev_b32 %s, 16, %s'%(vr(t3),vr(t3)))
        a('v_sub_f32 %s, %s, %s'%(vr(res[j]),vr(t1),vr(t2)))
        a('v_add_f32 %s, %s, %s'%(vr(res[4+j]),vr(t3),vr(t4)))
    for j in range(4):
        a('v_cvt_pk_bf16_f32 %s, %s, %s'%(vr(P1+j),vr(res[j]),vr(res[4+j])))
        a('v_cvt_pk_bf16_f32 %s, %s, -%s'%(vr(P2+j),vr(res[4+j]),vr(res[j])))
    wait_vm('sc')
    for hi,lo in ((sk1,sk0),(zk1,zk0),(sv1,sv0),(zv1,zv0)):
        a('v_lshlrev_b32 %s, 16, %s'%(vr(lo),vr(hi)))
        a('v_and_b32 %s, 0xffff0000, %s'%(vr(hi),vr(hi)))
    a('s_mov_b32 s60, 0x00010001'); a('s_mov_b32 s61, 0x00010001')
    a('v_mov_b32 %s, 0'%vr(LOG))
    wait_vm('dma')
    def csread(s):
        a('ds_read_b64 %s, %s offset:%d'%(vr(Cb,2),vr(vC),s*256))
        a('ds_read_b64 %s, %s offset:%d'%(vr(Cb+2,2),vr(vC),s*256+128))
        a('ds_read_b64 %s, %s offset:%d'%(vr(Cb+4,2),vr(vC),4096+s*256))
        a('ds_read_b64 %s, %s offset:%d'%(vr(Cb+6,2),vr(vC),4096+s*256+128))
    csread(0)
    DP=' row_mask:0xf bank_mask:0xf'
    pend=[]
    for s in range(NT):
        slot=ring+8*(s%NS)
        a('s_waitcnt lgkmcnt(0)')
        perms=[]
        for j in range(4):
            sel=sel1 if j&1 else sel0
            perms.append('v_perm_b32 %s, %s, %s, s%d'%(vr(X+j),vr(Cb+6+(j>>1)),vr(Cb+(j>>1)),sel))
        for j in range(4):
            sel=sel1 if j&1 else sel0
            perms.append('v_perm_b32 %s, %s, %s, s%d'%(vr(X+4+j),vr(Cb+4+(j>>1)),vr(Cb+2+(j>>1)),sel))
        for k in range(8):
            a(perms[k])
            if k%2==1 and pend: a(pend.pop(0))
        if s+1<NT: csread(s+1)
        while pend: a(pend.pop(0))
        for j in range(4): a('v_dot2_f32_bf16 %s, %s, %s, 0'%(vr(X+j),vr(X+j),vr(P1+j)))
        for j in range(4): a('v_dot2_f32_bf16 %s, %s, %s, 0'%(vr(X+4+j),vr(X+4+j),vr(P2+j)))
        wait_vm('L%d'%s)
        for j in range(8): a('v_cvt_f32_i32 %s, %s'%(vr(slot+j),vr(slot+j)))
        for j in range(8):
            z=zk0 if j<4 else zk1
            a('v_subrev_f32_dpp %s, %s, %s row_newbcast:%d%s'%(vr(slot+j),vr(z),vr(slot+j),s,DP))
        a('v_mul_f32 %s, %s, %s'%(vr(A0),vr(slot),vr(X)))
        a('v_mul_f32 %s, %s, %s'%(vr(A1),vr(slot+4),vr(X+4)))
        a('v_fmac_f32 %s, %s, %s'%(vr(A0),vr(slot+1),vr(X+1)))
        a('v_fmac_f32 %s, %s, %s'%(vr(A1),vr(slot+5),vr(X+5)))
        a('v_fmac_f32 %s, %s, %s'%(vr(A0),vr(slot+2),vr(X+2)))
        a('v_fmac_f32 %s, %s, %s'%(vr(A0),vr(slot+3),vr(X+3)))
        a('v_fmac_f32 %s, %s, %s'%(vr(A1),vr(slot+6),vr(X+6)))
        a('v_fmac_f32 %s, %s, %s'%(vr(A1),vr(slot+7),vr(X+7)))
        a('v_mul_f32_dpp %s, %s, %s row_newbcast:%d%s'%(vr(UU),vr(sk0),vr(A0),s,DP))
        if s+NS<NL: issue(s+NS)
        a('v_fmac_f32_dpp %s, %s, %s row_newbcast:%d%s'%(vr(UU),vr(sk1),vr(A1),s,DP))
        pend=['v_add_f32_dpp %s, %s, %s row_ror:%d%s'%(vr(UU),vr(UU),vr(UU),k,DP) for k in (8,4,2,1)]
        pend.append('s_lshl_b64 s[62:63], s[60:61], %d\nv_cndmask_b32 %s, %s, %s, s[62:63]'%(s,vr(LOG),vr(LOG),vr(UU)))
    while pend: a(pend.pop(0))
    c=math.log2(math.e)/math.sqrt(128.0)
    import struct
    cbits=struct.unpack('<I',struct.pack('<f',c))[0]
    m_,l_=mM,mM+1
    a('v_mul_f32 %s, 0x%08x, %s'%(vr(LOG),cbits,vr(LOG)))
    a('v_max_f32_dpp %s, %s, %s row_ror:8%s'%(vr(m_),vr(LOG),vr(LOG),DP))
    for k in (4,2,1): a('v_max_f32_dpp %s, %s, %s row_ror:%d%s'%(vr(m_),vr(m_),vr(m_),k,DP))
    a('v_sub_f32 %s, %s, %s'%(vr(l_),vr(LOG),vr(m_)))
    a('v_exp_f32 %s, %s'%(vr(l_),vr(l_)))
    a('s_nop 0')
    a('v_mul_f32 %s, %s, %s'%(vr(a0),vr(l_),vr(sv0)))
    a('v_mul_f32 %s, %s, %s'%(vr(a1),vr(l_),vr(sv1)))
    a('v_mul_f32 %s, %s, %s'%(vr(c0),vr(a0),vr(zv0)))
    a('v_mul_f32 %s, %s, %s'%(vr(c1),vr(a1),vr(zv1)))
    for k in (8,4,2,1):
        for x in (l_,c0,c1): a('v_add_f32_dpp %s, %s, %s row_ror:%d%s'%(vr(x),vr(x),vr(x),k,DP))
    for s in range(NT):
        j=NT+s; slot=ring+8*(j%NS)
        wait_vm('L%d'%j)
        for k in range(8): a('v_cvt_f32_i32 %s, %s'%(vr(slot+k),vr(slot+k)))
        for k in range(8):
            aa=a0 if k<4 else a1
            op='v_mul_f32_dpp' if s==0 else 'v_fmac_f32_dpp'
            a('%s %s, %s, %s row_newbcast:%d%s'%(op,vr(acc+k),vr(aa),vr(slot+k),s,DP))
        if j+NS<NL: issue(j+NS)
    for k in range(8): a('v_sub_f32 %s, %s, %s'%(vr(acc+k),vr(acc+k),vr(c0 if k<4 else c1)))
    a('v_lshlrev_b32 %s, 4, %s'%(vr(vT0),vr(vI)))
    a('v_lshl_add_u32 %s, %s, 9, %s'%(vr(vT0),vr(vRr),vr(vT0)))
    a('v_lshlrev_b32 %s, 3, %s'%(vr(vT1),vr(vRr)))
    a('v_add_u32 %s, 2048, %s'%(vr(vT1),vr(vT1)))
    a('v_add_u32 %s, s%d, %s'%(vr(vT2),sLb,vr(vT0)))
    a('v_add_u32 %s, s%d, %s'%(vr(vC),sLb,vr(vT1)))
    a('ds_write_b128 %s, %s'%(vr(vT2),vr(acc,4)))
    a('ds_write_b128 %s, %s offset:256'%(vr(vT2),vr(acc+4,4)))
    a('ds_write_b64 %s, %s'%(vr(vC),vr(mM,2)))
    a('s_waitcnt lgkmcnt(0)')
    a('s_barrier')
    a('s_cmp_lg_u32 s%d, 0'%sw)
    a('s_cbranch_scc1 L_end')
    rg=ring
    assert 8*NS>=80 or True
    big=max(nring_end, ring+80)
    ml=rg+64
    for w in range(8): a('ds_read_b64 %s, %s offset:%d'%(vr(ml+2*w,2),vr(vT1),w*8192))
    for w in range(8):
        a('ds_read_b128 %s, %s offset:%d'%(vr(rg+8*w,4),vr(vT0),w*8192))
        a('ds_read_b128 %s, %s offset:%d'%(vr(rg+8*w+4,4),vr(vT0),w*8192+256))
    a('s_waitcnt lgkmcnt(15)')
    a('s_waitcnt lgkmcnt(0)')
    a('v_max3_f32 %s, %s, %s, %s'%(vr(m_),vr(ml),vr(ml+2),vr(ml+4)))
    a('v_max3_f32 %s, %s, %s, %s'%(vr(m_),vr(m_),vr(ml+6),vr(ml+8)))
    a('v_max3_f32 %s, %s, %s, %s'%(vr(m_),vr(m_),vr(ml+10),vr(ml+12)))
    a('v_max_f32 %s, %s, %s'%(vr(m_),vr(m_),vr(ml+14)))
    for w in range(8): a('v_sub_f32 %s, %s, %s'%(vr(ml+2*w),vr(ml+2*w),vr(m_)))
    for w in range(8): a('v_exp_f32 %s, %s'%(vr(ml+2*w),vr(ml+2*w)))
    a('s_nop 0')
    a('v_mul_f32 %s, %s, %s'%(vr(l_),vr(ml),vr(ml+1)))
    for w in range(1,8): a('v_fmac_f32 %s, %s, %s'%(vr(l_),vr(ml+2*w),vr(ml+2*w+1)))
    for k in range(8): a('v_mul_f32 %s, %s, %s'%(vr(acc+k),vr(ml),vr(rg+k)))
    for w in range(1,8):
        for k in range(8): a('v_fmac_f32 %s, %s, %s'%(vr(acc+k),vr(ml+2*w),vr(rg+8*w+k)))
    sRec=60
    a('s_lshl_b32 s%d, s%d, 6'%(sT,sb))
    a('s_add_u32 s%d, s%d, s%d'%(sT2,sT,sg))
    a('s_mul_i32 s%d, s%d, %d'%(sRec,sT2,REC))
    a('buffer_store_dwordx4 %s, %s, %s, s%d offen sc1'%(vr(acc,4),vr(vT0),srd(sW),sRec))
    a('buffer_store_dwordx4 %s, %s, %s, s%d offen offset:256 sc1'%(vr(acc+4,4),vr(vT0),srd(sW),sRec))
    a('s_mov_b32 exec_lo, 0x00010001'); a('s_mov_b32 exec_hi, 0x00010001')
    a('buffer_store_dwordx2 %s, %s, %s, s%d offen sc1'%(vr(mM,2),vr(vT1),srd(sW),sRec))
    a('s_mov_b64 exec, 1')
    a('v_mov_b32 %s, 1'%vr(A0))
    a('s_lshl_b32 s61, s%d, 6'%sb)
    a('s_waitcnt vmcnt(0)')
    a('buffer_atomic_add %s, off, %s, s61 sc0 sc1'%(vr(A0),srd(sD)))
    a('s_waitcnt vmcnt(0)')
    a('v_readfirstlane_b32 s62, %s'%vr(A0))
    a('s_nop 4')
    a('s_cmp_lt_u32 s62, %d'%(64-R))
    a('s_cbranch_scc1 L_end')
    a('s_cmp_eq_u32 s62, 63')
    a('s_cbranch_scc1 L_go')
    a('s_mov_b32 s63, 0x400000')
    a('L_spin:')
    a('buffer_load_dword %s, off, %s, s61 sc1'%(vr(A1),srd(sD)))
    a('s_waitcnt vmcnt(0)')
    a('v_readfirstlane_b32 s64, %s'%vr(A1))
    a('s_sub_u32 s63, s63, 1')
    a('s_cbranch_scc1 L_go')
    a('s_nop 2')
    a('s_cmp_lt_u32 s64, 64')
    a('s_cbranch_scc1 L_spin')
    a('L_go:')
    a('s_mov_b64 exec, -1')
    assert R==16
    a('s_sub_u32 s62, s62, 48')
    a('s_lshr_b32 s65, s62, 2')
    a('s_and_b32 s66, s62, 3')
    a('s_mul_i32 s67, s%d, %d'%(sb,64*REC))
    a('s_lshl_b32 s68, s65, 9'); a('s_add_u32 s68, s68, s67')
    a('s_lshl_b32 s69, s66, 7'); a('s_add_u32 s68, s68, s69')
    a('s_lshl_b32 s69, s65, 3'); a('s_add_u32 s69, s69, s67'); a('s_add_u32 s69, s69, 2048')
    vL,vJ,vDq,vA,vM,vB=vT0,vT1,vT2,vC,vKV,vI
    a('v_and_b32 %s, 63, v0'%vr(vL))
    a('v_lshrrev_b32 %s, 3, %s'%(vr(vJ),vr(vL)))
    a('v_and_b32 %s, 7, %s'%(vr(vDq),vr(vL)))
    a('v_mul_u32_u24 %s, %d, %s'%(vr(vM),REC,vr(vL)))
    a('v_mul_u32_u24 %s, %d, %s'%(vr(vB),REC,vr(vJ)))
    a('v_lshl_add_u32 %s, %s, 4, %s'%(vr(vA),vr(vDq),vr(vB)))
    mlall=mM
    a('buffer_load_dwordx2 %s, %s, %s, s69 offen sc1'%(vr(mlall,2),vr(vM),srd(sW)))
    mk=rg+32
    for k in range(8):
        a('buffer_load_dword %s, %s, %s, s69 offen sc1'%(vr(mk+k),vr(vB),srd(sW)))
        if k<7: a('s_add_u32 s69, s69, %d'%(8*REC))
    for k in range(8):
        a('buffer_load_dwordx4 %s, %s, %s, s68 offen sc1'%(vr(rg+4*k,4),vr(vA),srd(sW)))
        if k<7: a('s_add_u32 s68, s68, %d'%(8*REC))
    a('s_waitcnt vmcnt(16)')
    Mx=A0; Tm=A1
    a('v_max_f32_dpp %s, %s, %s row_ror:8%s'%(vr(Mx),vr(mlall),vr(mlall),DP))
    for k in (4,2,1): a('v_max_f32_dpp %s, %s, %s row_ror:%d%s'%(vr(Mx),vr(Mx),vr(Mx),k,DP))
    a('v_mov_b32 %s, %s'%(vr(Tm),vr(Mx)))
    a('v_permlane16_swap_b32 %s, %s'%(vr(Mx),vr(Tm)))
    a('v_max_f32 %s, %s, %s'%(vr(Mx),vr(Mx),vr(Tm)))
    a('v_mov_b32 %s, %s'%(vr(Tm),vr(Mx)))
    a('v_permlane32_swap_b32 %s, %s'%(vr(Mx),vr(Tm)))
    a('v_max_f32 %s, %s, %s'%(vr(Mx),vr(Mx),vr(Tm)))
    Ls=UU
    a('v_sub_f32 %s, %s, %s'%(vr(Ls),vr(mlall),vr(Mx)))
    a('v_exp_f32 %s, %s'%(vr(Ls),vr(Ls)))
    a('s_nop 0')
    a('v_mul_f32 %s, %s, %s'%(vr(Ls),vr(Ls),vr(mlall+1)))
    for k in (8,4,2,1): a('v_add_f32_dpp %s, %s, %s row_ror:%d%s'%(vr(Ls),vr(Ls),vr(Ls),k,DP))
    a('v_mov_b32 %s, %s'%(vr(Tm),vr(Ls)))
    a('v_permlane16_swap_b32 %s, %s'%(vr(Ls),vr(Tm)))
    a('v_add_f32 %s, %s, %s'%(vr(Ls),vr(Ls),vr(Tm)))
    a('v_mov_b32 %s, %s'%(vr(Tm),vr(Ls)))
    a('v_permlane32_swap_b32 %s, %s'%(vr(Ls),vr(Tm)))
    a('v_add_f32 %s, %s, %s'%(vr(Ls),vr(Ls),vr(Tm)))
    a('v_rcp_f32 %s, %s'%(vr(Ls),vr(Ls)))
    a('s_waitcnt vmcnt(8)')
    for k in range(8): a('v_sub_f32 %s, %s, %s'%(vr(mk+k),vr(mk+k),vr(Mx)))
    for k in range(8): a('v_exp_f32 %s, %s'%(vr(mk+k),vr(mk+k)))
    a('s_waitcnt vmcnt(0)')
    for e in range(4): a('v_mul_f32 %s, %s, %s'%(vr(acc+e),vr(mk),vr(rg+e)))
    for k in range(1,8):
        for e in range(4): a('v_fmac_f32 %s, %s, %s'%(vr(acc+e),vr(mk+k),vr(rg+4*k+e)))
    for e in range(4): a('v_add_f32_dpp %s, %s, %s row_ror:8%s'%(vr(acc+e),vr(acc+e),vr(acc+e),DP))
    for sw_ in ('v_permlane16_swap_b32','v_permlane32_swap_b32'):
        for e in range(4): a('v_mov_b32 %s, %s'%(vr(acc+4+e),vr(acc+e)))
        for e in range(4): a('%s %s, %s'%(sw_,vr(acc+e),vr(acc+4+e)))
        for e in range(4): a('v_add_f32 %s, %s, %s'%(vr(acc+e),vr(acc+e),vr(acc+4+e)))
    for e in range(4): a('v_mul_f32 %s, %s, %s'%(vr(acc+e),vr(acc+e),vr(Ls)))
    a('v_cvt_pk_bf16_f32 %s, %s, %s'%(vr(acc),vr(acc),vr(acc+1)))
    a('v_cvt_pk_bf16_f32 %s, %s, %s'%(vr(acc+1),vr(acc+2),vr(acc+3)))
    a('s_lshl_b32 s70, s%d, 2'%sb); a('s_add_u32 s70, s70, s65'); a('s_lshl_b32 s70, s70, 8')
    a('s_lshl_b32 s71, s66, 6'); a('s_add_u32 s70, s70, s71')
    a('v_lshlrev_b32 %s, 3, %s'%(vr(vDq),vr(vDq)))
    a('s_mov_b64 exec, 0xff')
    a('buffer_store_dwordx2 %s, %s, %s, s70 offen'%(vr(acc,2),vr(vDq),srd(sO)))
    a('L_end:')
    a('s_endpgm')
    lines,nn=fix_hazards(o)
    nvg=(max(big,nv[0])+7)//8*8
    nvg=max(nvg,136)
    txt=HDR%(256,512,65536)+'\n'+'\n'.join(lines)+'\n'+FTR%(nvg,102,nvg)
    return txt, dict(nops=nn,vgpr=nvg,ninstr=len(lines))

if __name__=='__main__':
    kw={}
    for x in sys.argv[2:]:
        k,v=x.split('='); kw[k]=int(v) if v.lstrip('-').isdigit() else v
    t,info=gen(**kw)
    open(sys.argv[1],'w').write(t); print(info)
```

```python
from asmlib import *
import math, sys, struct

REC=2176
MLB=256*REC
WSZ=MLB+16*64*8
MAPS={
 'yx':['k','w0','w1','w2','x0','x1','x2','y0','y1','y2'],
 'xy':['k','w0','w1','w2','y0','y1','y2','x0','x1','x2'],
 'x4':['x0','x1','x2','k','w0','w1','w2','y0','y1','y2'],
 'x8':['k','x0','x1','x2','w0','w1','w2','y0','y1','y2'],
 'x16':['k','w0','x0','x1','x2','w1','w2','y0','y1','y2'],
 'x32':['k','w0','w1','x0','x1','x2','w2','y0','y1','y2'],
}
def bitrev4(x): return ((x&1)<<3)|((x&2)<<1)|((x&4)>>1)|((x&8)>>3)

def gen(POL='nt', NS=16, CPOL='', SPOL='', tb='s0 s1 x0 s2 s3 x1 x2 w0 w1 w2 y0 y1 y2', RX=1, ST=0, TK=10, MW=7, R=16, bm='mid', xm='', HALF=1, OPOL='', KF=0):
    o=[]; a=o.append
    NT=16
    tb=tb.split()
    assert sorted(tb)==sorted(['s0','s1','s2','s3','w0','w1','w2','x0','x1','x2','y0','y1','y2']) and tb[0]=='s0' and tb[1]=='s1'
    p2,p3=tb.index('s2'),tb.index('s3')
    assert HALF==1 and p3>=2
    sK,sV,sC,sS,sQ,sKS,sKZ,sVS,sVZ,sQC,sQS,sO,sD,sW=4,8,12,16,20,24,28,32,36,40,44,48,52,56
    sw,sb,sg,soA,soB,sT,sT2,sel0,sel1,sBlk,sQo,sSo,sDo,sLb=88,89,90,91,92,93,94,95,96,97,98,99,100,101
    def srd(n): return 's[%d:%d]'%(n,n+3)
    nv=[1]
    def V(n=1,al=1):
        x=(nv[0]+al-1)//al*al; nv[0]=x+n; return x
    def vr(x,n=1): return 'v%d'%x if n==1 else 'v[%d:%d]'%(x,x+n-1)
    vKV=V(4); vC=V(4); vT0=V(); vT1=V(); vI=V(); vRr=V(); vT2=V()
    P1=V(4,2); P2=V(4,2)
    Cb=V(8,2); X=V(8,2)
    zk0=V();zk1=V();sk0=V();sk1=V();zv0=V();zv1=V();sv0=V();sv1=V()
    A0=V();A1=V();UU=V();LOG=V()
    UA=V();UB=V();R1=[V(),V()];R2=[V(),V()];R3=[V(),V()];T3=V();T4=V()
    acc=V(8,4)
    a0=V();a1=V();mM=V(2,2);c0=V();c1=V()
    vTK=V(); vST=V()
    vWA=V(); vWM=V(); vRM=V(); vSA=V()
    ring=V(8*NS,4)
    big=max(nv[0],ring+48)
    DP=' row_mask:0xf bank_mask:0xf'
    LDSW=8192 if not HALF else 4096
    def stamp(k):
        if not ST: return
        a('s_memrealtime s[0:1]'); a('s_waitcnt lgkmcnt(0)'); a('v_writelane_b32 v%d, s0, %d'%(vST,k))
    issued=[]
    def vm(text,tag): a(text); issued.append(tag)
    def wait_vm(tag):
        idx=max(i for i,t in enumerate(issued) if t==tag); n=len(issued)-1-idx
        assert n<=63
        a('s_waitcnt vmcnt(%d)'%n)
    a('s_load_dwordx16 s[60:75], s[0:1], 0')
    a('s_load_dwordx8 s[76:83], s[0:1], 64')
    a('s_load_dwordx4 s[84:87], s[0:1], 96')
    if ST: a('s_memrealtime s[0:1]')
    a('s_cmp_ge_u32 s2, 256')
    a('s_cbranch_scc1 L_end')
    a('v_lshrrev_b32 %s, 6, v0'%vr(vT0))
    a('v_and_b32 %s, 15, v0'%vr(vI))
    a('v_readfirstlane_b32 s%d, %s'%(sw,vr(vT0)))
    a('v_bfe_u32 %s, v0, 4, 2'%vr(vRr))
    if xm:
        cols=[int(v,16) for v in xm.split(':')]
        a('s_mov_b32 s4, 0')
        for bit,cm in enumerate(cols):
            a('s_bfe_i32 s5, s2, 0x%x'%((1<<16)|bit)); a('s_and_b32 s5, s5, 0x%x'%cm); a('s_xor_b32 s4, s4, s5')
        a('s_mov_b32 s3, s4')
    else: a('s_mov_b32 s3, s2')
    if bm=='mid':
        a('s_and_b32 s%d, s3, 7'%sT)
        a('s_bfe_u32 s%d, s3, 0x20003'%sb)
    else:
        a('s_and_b32 s%d, s3, 3'%sb)
        a('s_bfe_u32 s%d, s3, 0x30002'%sT)
    a('s_lshr_b32 s%d, s3, 5'%sT2)
    a('s_lshl_b32 s%d, s%d, 3'%(sg,sT2)); a('s_add_u32 s%d, s%d, s%d'%(sg,sg,sT))
    sizes={sK:64<<20,sV:64<<20,sC:2<<20,sS:2<<20,sQ:4096,sKS:512<<10,sKZ:512<<10,sVS:512<<10,sVZ:512<<10,sQC:256,sQS:256,sO:4096,sD:256,sW:(WSZ if not ST else (2<<20))}
    for n,sz in sizes.items():
        a('s_mov_b32 s%d, 0x%x'%(n+2,sz)); a('s_mov_b32 s%d, 0x20000'%(n+3))
    a('s_mov_b32 s%d, 0'%sBlk)
    pos=0
    while pos<13:
        src=tb[pos]
        if src[0]=='s': pos+=1; continue
        f=src[0]; b0=int(src[1]); n=1
        while pos+n<13 and tb[pos+n][0]==f and int(tb[pos+n][1])==b0+n: n+=1
        reg={'w':sw,'x':sT,'y':sT2}[f]
        a('s_bfe_u32 s%d, s%d, 0x%x'%(sQo,reg,(n<<16)|b0))
        a('s_lshl_b32 s%d, s%d, %d'%(sQo,sQo,pos))
        a('s_or_b32 s%d, s%d, s%d'%(sBlk,sBlk,sQo))
        pos+=n
    vQo,vQc,vSo,vD=X,X+1,X+2,X+3
    tA,tB=X+4,X+5
    a('v_lshlrev_b32 %s, 4, %s'%(vr(vT1),vr(vI)))
    a('v_lshl_add_u32 %s, %s, 22, %s'%(vr(vT1),vr(vRr),vr(vT1)))
    a('v_lshlrev_b32 %s, 3, %s'%(vr(vQc),vr(vI)))
    a('s_lshl_b32 s%d, s%d, 12'%(sLb,sw))
    for hi in range(4):
        if RX: a('v_xor_b32 %s, %d, %s'%(vr(tA),hi,vr(vRr)))
        else:  a('v_mov_b32 %s, %d'%(vr(tA),hi))
        a('v_lshl_add_u32 %s, %s, 9, %s'%(vr(vC+hi),vr(tA),vr(vQc)))
        a('v_add_u32 %s, s%d, %s'%(vr(vC+hi),sLb,vr(vC+hi)))
        a('v_and_b32 %s, 1, %s'%(vr(tB),vr(tA)))
        a('v_lshl_add_u32 %s, %s, %d, %s'%(vr(vKV+hi),vr(tB),9+p2,vr(vT1)))
        a('v_lshrrev_b32 %s, 1, %s'%(vr(tB),vr(tA)))
        a('v_lshl_add_u32 %s, %s, %d, %s'%(vr(vKV+hi),vr(tB),9+p3,vr(vKV+hi)))
    a('v_lshl_add_u32 %s, %s, 8, %s'%(vr(vQo),vr(vRr),vr(vQc)))
    a('v_bfrev_b32 %s, %s'%(vr(vD),vr(vI)))
    a('v_lshrrev_b32 %s, 28, %s'%(vr(vD),vr(vD)))
    if RX:
        a('v_lshlrev_b32 %s, 2, %s'%(vr(tA),vr(vRr)))
        a('v_xor_b32 %s, %s, %s'%(vr(vD),vr(vD),vr(tA)))
    a('v_and_b32 %s, 3, %s'%(vr(vSo),vr(vD)))
    a('v_lshlrev_b32 %s, 2, %s'%(vr(vSo),vr(vSo)))
    a('v_bfe_u32 %s, %s, 2, 1'%(vr(tA),vr(vD)))
    a('v_lshl_add_u32 %s, %s, %d, %s'%(vr(vSo),vr(tA),2+p2,vr(vSo)))
    a('v_lshrrev_b32 %s, 3, %s'%(vr(tA),vr(vD)))
    a('v_lshl_add_u32 %s, %s, %d, %s'%(vr(vSo),vr(tA),2+p3,vr(vSo)))
    a('v_lshl_add_u32 %s, %s, 15, %s'%(vr(vSo),vr(vRr),vr(vSo)))
    a('v_and_b32 %s, 63, v0'%vr(vT2))
    a('v_lshlrev_b32 %s, 4, %s'%(vr(vSA),vr(vT2)))
    a('v_bfe_u32 %s, %s, 3, 2'%(vr(tA),vr(vT2)))
    a('v_and_b32 %s, 7, %s'%(vr(vD),vr(vT2)))
    a('v_lshlrev_b32 %s, 4, %s'%(vr(vD),vr(vD)))
    a('v_lshl_add_u32 %s, %s, 8, %s'%(vr(vD),vr(tA),vr(vD)))
    a('v_lshrrev_b32 %s, 5, %s'%(vr(tA),vr(vT2)))
    a('v_lshl_add_u32 %s, %s, %d, %s'%(vr(vD),vr(tA),8+p2,vr(vD)))
    a('s_lshl_b32 s%d, s%d, 24'%(soA,sb))
    a('s_lshl_b32 s%d, s%d, 9'%(sT,sBlk))
    a('s_add_u32 s%d, s%d, s%d'%(soA,soA,sT))
    a('s_lshl_b32 s%d, s%d, 10'%(sQo,sb))
    a('s_lshl_b32 s%d, s%d, 17'%(sSo,sb))
    a('s_lshl_b32 s%d, s%d, 2'%(sT,sBlk))
    a('s_add_u32 s%d, s%d, s%d'%(sSo,sSo,sT))
    a('s_lshl_b32 s%d, s%d, 8'%(sDo,sBlk))
    a('s_mov_b32 s%d, 0x05040100'%sel0)
    a('s_mov_b32 s%d, 0x07060302'%sel1)
    a('s_mov_b32 m0, s%d'%sLb)
    a('s_add_u32 s%d, s%d, %d'%(sBlk,sDo,(256<<p3)-1024))
    if ST: a('v_mov_b32 v%d, 0'%vST)
    a('s_waitcnt lgkmcnt(0)')
    if ST: a('v_writelane_b32 v%d, s0, 0'%vST)
    stamp(1)
    mv={sQ:60,sK:62,sKS:64,sKZ:66,sV:68,sVS:70,sVZ:72,sQC:74,sQS:76,sC:78,sS:80,sO:82,sD:84,sW:86}
    NL=2*NT
    def issue(j):
        slot=ring+8*(j%NS); s=j%NT; base=sK if j<NT else sV
        off=(s%4)*512; tag='L%d'%j
        vm('buffer_load_dwordx4 %s, %s, %s, s%d offen offset:%d %s'%(vr(slot,4),vr(vKV+(s>>2)),srd(base),soA,off,POL),tag)
        vm('buffer_load_dwordx4 %s, %s, %s, s%d offen offset:%d %s'%(vr(slot+4,4),vr(vKV+(s>>2)),srd(base),soA,off+256,POL),tag)
    def mov(n): a('s_mov_b64 s[%d:%d], s[%d:%d]'%(n,n+1,mv[n],mv[n]+1))
    mov(sK)
    for j in range(KF): issue(j)
    for n in (sQ,sQC,sQS,sKS,sKZ,sVS,sVZ,sC,sS): mov(n)
    vm('buffer_load_dwordx2 %s, %s, %s, s%d offen'%(vr(P1,2),vr(vQo),srd(sQ),sQo),'q')
    vm('buffer_load_dwordx2 %s, %s, %s, s%d offen offset:128'%(vr(P1+2,2),vr(vQo),srd(sQ),sQo),'q')
    vm('buffer_load_dwordx2 %s, %s, %s, 0 offen'%(vr(Cb,2),vr(vQc),srd(sQC)),'q')
    vm('buffer_load_dwordx2 %s, %s, %s, 0 offen offset:128'%(vr(Cb+2,2),vr(vQc),srd(sQC)),'q')
    vm('buffer_load_dwordx2 %s, %s, %s, 0 offen'%(vr(Cb+4,2),vr(vQc),srd(sQS)),'q')
    vm('buffer_load_dwordx2 %s, %s, %s, 0 offen offset:128'%(vr(Cb+6,2),vr(vQc),srd(sQS)),'q')
    vm('buffer_load_dword %s, %s, %s, s%d offen %s'%(vr(sk1),vr(vSo),srd(sKS),sSo,SPOL),'sc')
    vm('buffer_load_dword %s, %s, %s, s%d offen %s'%(vr(zk1),vr(vSo),srd(sKZ),sSo,SPOL),'sc')
    vm('buffer_load_dword %s, %s, %s, s%d offen %s'%(vr(sv1),vr(vSo),srd(sVS),sSo,SPOL),'sc')
    vm('buffer_load_dword %s, %s, %s, s%d offen %s'%(vr(zv1),vr(vSo),srd(sVZ),sSo,SPOL),'sc')
    for t,tbl in enumerate((sC,sS)):
        if t:
            a('s_add_u32 s%d, s%d, %d'%(sT,sLb,LDSW//2)); a('s_mov_b32 m0, s%d'%sT)
        if HALF:
            for k in range(2):
                vm('buffer_load_dwordx4 %s, %s, s%d offen offset:%d %s lds'%(vr(vD),srd(tbl),sDo if k<1 else sBlk,k*1024,CPOL),'dma')
        else:
            for k in range(4):
                vm('buffer_load_dwordx4 %s, %s, s%d offen offset:%d %s lds'%(vr(vD),srd(tbl),sDo if k<2 else sBlk,k*1024,CPOL),'dma')
    for j in range(KF,min(NS,NL)): issue(j)
    for n in (sV,sW,sO,sD): mov(n)
    a('s_lshl_b32 s64, s%d, 6'%sb); a('s_add_u32 s64, s64, s%d'%sg); a('s_mul_i32 s64, s64, %d'%REC)
    a('s_lshl_b32 s65, s%d, 11'%sb); a('s_lshl_b32 s66, s%d, 3'%sg); a('s_add_u32 s65, s65, s66'); a('s_add_u32 s65, s65, %d'%MLB)
    a('s_lshl_b32 s67, s%d, 6'%sb)
    a('s_cmp_lg_u32 s%d, %d'%(sw,MW))
    a('s_cbranch_scc1 L_nomark')
    for k in range(4): a('v_mov_b32 %s, -1'%vr(acc+k))
    a('buffer_store_dwordx4 %s, %s, %s, s64 offen sc1'%(vr(acc,4),vr(vSA),srd(sW)))
    a('buffer_store_dwordx4 %s, %s, %s, s64 offen offset:1024 sc1'%(vr(acc,4),vr(vSA),srd(sW)))
    a('v_lshlrev_b32 %s, 5, %s'%(vr(vT2),vr(vSA)))
    a('s_mov_b64 exec, 15')
    a('buffer_store_dwordx2 %s, %s, %s, s65 offen sc1'%(vr(acc,2),vr(vT2),srd(sW)))
    a('s_mov_b64 exec, -1')
    a('s_nop 1')
    a('L_nomark:')
    mark_pos=len(issued)
    a('v_lshlrev_b32 %s, 4, %s'%(vr(vWA),vr(vI)))
    a('v_lshl_add_u32 %s, %s, 9, %s'%(vr(vWA),vr(vRr),vr(vWA)))
    a('v_add_u32 %s, s%d, %s'%(vr(vWA),sLb,vr(vWA)))
    a('v_lshlrev_b32 %s, 3, %s'%(vr(vWM),vr(vRr)))
    a('v_add_u32 %s, 2048, %s'%(vr(vWM),vr(vWM)))
    a('v_add_u32 %s, s%d, %s'%(vr(vWM),sLb,vr(vWM)))
    a('v_and_b32 %s, 63, v0'%vr(vT2))
    a('v_lshlrev_b32 %s, 2, %s'%(vr(vT2),vr(vT2)))
    a('s_lshl_b32 s68, s%d, 8'%sw)
    a('v_add_u32 %s, s68, %s'%(vr(vSA),vr(vT2)))
    a('s_lshr_b32 s69, s%d, 1'%sw)
    a('s_lshl_b32 s70, s69, 3'); a('s_add_u32 s70, s70, 2048')
    a('v_mov_b32 %s, s70'%vr(vRM))
    a('s_lshl_b32 s70, s69, 9'); a('s_add_u32 s65, s65, s70')
    a('v_mov_b32 %s, 1'%vr(vTK))
    wait_vm('q')
    stamp(2)
    t=[acc+k for k in range(8)]+[A0,A1,UU,LOG,a0,a1,c0,c1]
    ql,qh,cl,ch,sl,sh,t1,t2,t3,t4=t[0:10]
    res=[X+4,X+5,X+6,X+7, mM,mM+1, t[10],t[11]]
    def unpack(dst,src,j):
        r=src+(j>>1)
        if j&1: a('v_and_b32 %s, 0xffff0000, %s'%(vr(dst),vr(r)))
        else:   a('v_lshlrev_b32 %s, 16, %s'%(vr(dst),vr(r)))
    for j in range(4):
        unpack(ql,P1,j); unpack(qh,P1+2,j); unpack(cl,Cb,j); unpack(ch,Cb+2,j); unpack(sl,Cb+4,j); unpack(sh,Cb+6,j)
        a('v_mul_f32 %s, %s, %s'%(vr(t1),vr(ql),vr(cl)))
        a('v_mul_f32 %s, %s, %s'%(vr(t2),vr(qh),vr(sl)))
        a('v_mul_f32 %s, %s, %s'%(vr(t3),vr(qh),vr(ch)))
        a('v_mul_f32 %s, %s, %s'%(vr(t4),vr(ql),vr(sh)))
        a('v_cvt_pk_bf16_f32 %s, %s, %s'%(vr(t1),vr(t1),vr(t2)))
        a('v_cvt_pk_bf16_f32 %s, %s, %s'%(vr(t3),vr(t3),vr(t4)))
        a('v_and_b32 %s, 0xffff0000, %s'%(vr(t2),vr(t1)))
        a('v_lshlrev_b32 %s, 16, %s'%(vr(t1),vr(t1)))
        a('v_and_b32 %s, 0xffff0000, %s'%(vr(t4),vr(t3)))
        a('v_lshlrev_b32 %s, 16, %s'%(vr(t3),vr(t3)))
        a('v_sub_f32 %s, %s, %s'%(vr(res[j]),vr(t1),vr(t2)))
        a('v_add_f32 %s, %s, %s'%(vr(res[4+j]),vr(t3),vr(t4)))
    for j in range(4):
        a('v_cvt_pk_bf16_f32 %s, %s, %s'%(vr(P1+j),vr(res[j]),vr(res[4+j])))
        a('v_cvt_pk_bf16_f32 %s, %s, -%s'%(vr(P2+j),vr(res[4+j]),vr(res[j])))
    wait_vm('sc')
    for hi,lo in ((sk1,sk0),(zk1,zk0),(sv1,sv0),(zv1,zv0)):
        a('v_lshlrev_b32 %s, 16, %s'%(vr(lo),vr(hi)))
        a('v_and_b32 %s, 0xffff0000, %s'%(vr(hi),vr(hi)))
    a('s_mov_b32 s60, 0xcccccccc'); a('s_mov_b32 s61, 0xcccccccc')
    a('s_mov_b32 s62, 0xaaaaaaaa'); a('s_mov_b32 s63, 0xaaaaaaaa')
    wait_vm('dma')
    def csread(s):
        if HALF:
            a('ds_read_b64 %s, %s offset:%d'%(vr(Cb,2),vr(vC+(s>>2)),(s&3)*128))
            a('ds_read_b64 %s, %s offset:%d'%(vr(Cb+2,2),vr(vC+(s>>2)),2048+(s&3)*128))
        else:
            a('ds_read_b64 %s, %s offset:%d'%(vr(Cb,2),vr(vC),s*256))
            a('ds_read_b64 %s, %s offset:%d'%(vr(Cb+2,2),vr(vC),s*256+128))
            a('ds_read_b64 %s, %s offset:%d'%(vr(Cb+4,2),vr(vC),4096+s*256))
            a('ds_read_b64 %s, %s offset:%d'%(vr(Cb+6,2),vr(vC),4096+s*256+128))
    csread(0)
    def ticket():
        a('s_cmp_lg_u32 s%d, %d'%(sw,MW))
        a('s_cbranch_scc1 L_notk')
        a('s_waitcnt vmcnt(%d)'%min(63,len(issued)-mark_pos))
        a('s_mov_b64 exec, 1')
        a('buffer_atomic_add %s, off, %s, s67 sc0 sc1'%(vr(vTK),srd(sD)))
        a('s_mov_b64 exec, -1')
        a('L_notk:')
    def dpp(op,d,x,ctl,bank=0xf): return '%s %s, %s, %s %s row_mask:0xf bank_mask:0x%x'%(op,vr(d),vr(x),vr(x),ctl,bank)
    def merges(s):
        ops=[]
        if s&1==0: return ops
        r1=R1[(s>>1)&1]
        ops.append(dpp('v_add_f32_dpp',r1,UA,'row_ror:8',0x3))
        ops.append(dpp('v_add_f32_dpp',r1,UB,'row_ror:8',0xc))
        if s&3==3:
            r2=R2[(s>>2)&1]
            ops.append(dpp('v_add_f32_dpp',r2,R1[0],'row_half_mirror',0x5))
            ops.append(dpp('v_add_f32_dpp',r2,R1[1],'row_half_mirror',0xa))
            if s&7==7:
                r3=R3[(s>>3)&1]
                ops.append(dpp('v_add_f32_dpp',T3,R2[0],'quad_perm:[2,3,0,1]'))
                ops.append(dpp('v_add_f32_dpp',T4,R2[1],'quad_perm:[2,3,0,1]'))
                ops.append('v_cndmask_b32 %s, %s, %s, s[60:61]'%(vr(r3),vr(T3),vr(T4)))
                if s==15:
                    ops.append(dpp('v_add_f32_dpp',T3,R3[0],'quad_perm:[1,0,3,2]'))
                    ops.append(dpp('v_add_f32_dpp',T4,R3[1],'quad_perm:[1,0,3,2]'))
                    ops.append('v_cndmask_b32 %s, %s, %s, s[62:63]'%(vr(LOG),vr(T3),vr(T4)))
        return ops
    pend=[]
    for s in range(NT):
        slot=ring+8*(s%NS); ls=bitrev4(s)
        a('s_waitcnt lgkmcnt(0)')
        perms=[]
        if HALF:
            for j in range(4):
                perms.append('v_perm_b32 %s, %s, %s, s%d'%(vr(X+j),vr(Cb+2+(j>>1)),vr(Cb+(j>>1)),sel1 if j&1 else sel0))
        else:
            for j in range(4):
                perms.append('v_perm_b32 %s, %s, %s, s%d'%(vr(X+j),vr(Cb+6+(j>>1)),vr(Cb+(j>>1)),sel1 if j&1 else sel0))
            for j in range(4):
                perms.append('v_perm_b32 %s, %s, %s, s%d'%(vr(X+4+j),vr(Cb+4+(j>>1)),vr(Cb+2+(j>>1)),sel1 if j&1 else sel0))
        for k,p in enumerate(perms):
            a(p)
            if k%2==1 and pend: a(pend.pop(0))
        if s+1<NT: csread(s+1)
        dots=[]
        if HALF:
            for j in range(4): dots.append('v_dot2_f32_bf16 %s, %s, %s, 0'%(vr(X+4+j),vr(X+j),vr(P2+j)))
            for j in range(4): dots.append('v_dot2_f32_bf16 %s, %s, %s, 0'%(vr(X+j),vr(X+j),vr(P1+j)))
        else:
            for j in range(4): dots.append('v_dot2_f32_bf16 %s, %s, %s, 0'%(vr(X+j),vr(X+j),vr(P1+j)))
            for j in range(4): dots.append('v_dot2_f32_bf16 %s, %s, %s, 0'%(vr(X+4+j),vr(X+4+j),vr(P2+j)))
        for k,p in enumerate(dots):
            a(p)
            if k%2==1 and pend: a(pend.pop(0))
        wait_vm('L%d'%s)
        if s==0: stamp(3)
        if s==8: stamp(12)
        if s==TK: ticket()
        for j in range(8):
            a('v_cvt_f32_i32 %s, %s'%(vr(slot+j),vr(slot+j)))
            if j%2==1 and pend: a(pend.pop(0))
        while pend: a(pend.pop(0))
        for j in range(8):
            a('v_subrev_f32_dpp %s, %s, %s row_newbcast:%d%s'%(vr(slot+j),vr(zk0 if j<4 else zk1),vr(slot+j),ls,DP))
        a('v_mul_f32 %s, %s, %s'%(vr(A0),vr(slot),vr(X)))
        a('v_mul_f32 %s, %s, %s'%(vr(A1),vr(slot+4),vr(X+4)))
        a('v_fmac_f32 %s, %s, %s'%(vr(A0),vr(slot+1),vr(X+1)))
        a('v_fmac_f32 %s, %s, %s'%(vr(A1),vr(slot+5),vr(X+5)))
        a('v_fmac_f32 %s, %s, %s'%(vr(A0),vr(slot+2),vr(X+2)))
        a('v_fmac_f32 %s, %s, %s'%(vr(A0),vr(slot+3),vr(X+3)))
        a('v_fmac_f32 %s, %s, %s'%(vr(A1),vr(slot+6),vr(X+6)))
        a('v_fmac_f32 %s, %s, %s'%(vr(A1),vr(slot+7),vr(X+7)))
        U=UB if s&1 else UA
        a('v_mul_f32_dpp %s, %s, %s row_newbcast:%d%s'%(vr(U),vr(sk0),vr(A0),ls,DP))
        if s+NS<NL: issue(s+NS)
        a('v_fmac_f32_dpp %s, %s, %s row_newbcast:%d%s'%(vr(U),vr(sk1),vr(A1),ls,DP))
        pend=merges(s)
    while pend: a(pend.pop(0))
    stamp(4)
    c=math.log2(math.e)/math.sqrt(128.0)
    cbits=struct.unpack('<I',struct.pack('<f',c))[0]
    m_,l_=mM,mM+1
    a('v_mul_f32 %s, 0x%08x, %s'%(vr(LOG),cbits,vr(LOG)))
    a('v_max_f32_dpp %s, %s, %s row_ror:8%s'%(vr(m_),vr(LOG),vr(LOG),DP))
    for k in (4,2,1): a('v_max_f32_dpp %s, %s, %s row_ror:%d%s'%(vr(m_),vr(m_),vr(m_),k,DP))
    a('v_sub_f32 %s, %s, %s'%(vr(l_),vr(LOG),vr(m_)))
    a('v_exp_f32 %s, %s'%(vr(l_),vr(l_)))
    a('s_nop 0')
    a('v_mul_f32 %s, %s, %s'%(vr(a0),vr(l_),vr(sv0)))
    a('v_mul_f32 %s, %s, %s'%(vr(a1),vr(l_),vr(sv1)))
    a('v_mul_f32 %s, %s, %s'%(vr(c0),vr(a0),vr(zv0)))
    a('v_mul_f32 %s, %s, %s'%(vr(c1),vr(a1),vr(zv1)))
    for k in (8,4,2,1):
        for x in (l_,c0,c1): a('v_add_f32_dpp %s, %s, %s row_ror:%d%s'%(vr(x),vr(x),vr(x),k,DP))
    a('ds_write_b64 %s, %s'%(vr(vWM),vr(mM,2)))
    for k in range(8): a('v_sub_f32 %s, 0, %s'%(vr(acc+k),vr(c0 if k<4 else c1)))
    for s in range(NT):
        j=NT+s; slot=ring+8*(j%NS); ls=bitrev4(s)
        wait_vm('L%d'%j)
        if s==0: stamp(13)
        if s==8: stamp(14)
        if j==TK: ticket()
        for k in range(8): a('v_cvt_f32_i32 %s, %s'%(vr(slot+k),vr(slot+k)))
        for k in range(8):
            a('v_fmac_f32_dpp %s, %s, %s row_newbcast:%d%s'%(vr(acc+k),vr(a0 if k<4 else a1),vr(slot+k),ls,DP))
        if j+NS<NL: issue(j+NS)
    stamp(5)
    a('ds_write_b128 %s, %s'%(vr(vWA),vr(acc,4)))
    a('ds_write_b128 %s, %s offset:256'%(vr(vWA),vr(acc+4,4)))
    a('s_waitcnt lgkmcnt(0)')
    a('s_barrier')
    stamp(6)
    rg=ring; ml=rg+16
    for w in range(8): a('ds_read_b64 %s, %s offset:%d'%(vr(ml+2*w,2),vr(vRM),w*LDSW))
    for w in range(8): a('ds_read_b32 %s, %s offset:%d'%(vr(rg+w),vr(vSA),w*LDSW))
    a('s_waitcnt lgkmcnt(8)')
    a('v_max3_f32 %s, %s, %s, %s'%(vr(m_),vr(ml),vr(ml+2),vr(ml+4)))
    a('v_max3_f32 %s, %s, %s, %s'%(vr(A0),vr(ml+6),vr(ml+8),vr(ml+10)))
    a('v_max3_f32 %s, %s, %s, %s'%(vr(m_),vr(m_),vr(ml+12),vr(ml+14)))
    a('v_max_f32 %s, %s, %s'%(vr(m_),vr(m_),vr(A0)))
    for w in range(8): a('v_sub_f32 %s, %s, %s'%(vr(ml+2*w),vr(ml+2*w),vr(m_)))
    for w in range(8): a('v_exp_f32 %s, %s'%(vr(ml+2*w),vr(ml+2*w)))
    a('s_waitcnt lgkmcnt(0)')
    a('v_mul_f32 %s, %s, %s'%(vr(A0),vr(ml),vr(rg)))
    a('v_mul_f32 %s, %s, %s'%(vr(A1),vr(ml+2),vr(rg+1)))
    a('v_mul_f32 %s, %s, %s'%(vr(l_),vr(ml),vr(ml+1)))
    for w in range(2,8,2):
        a('v_fmac_f32 %s, %s, %s'%(vr(A0),vr(ml+2*w),vr(rg+w)))
        a('v_fmac_f32 %s, %s, %s'%(vr(A1),vr(ml+2*w+2),vr(rg+w+1)))
    a('v_add_f32 %s, %s, %s'%(vr(A0),vr(A0),vr(A1)))
    a('v_min_u32 %s, -2, %s'%(vr(A0),vr(A0)))
    a('buffer_store_dword %s, %s, %s, s64 offen sc1'%(vr(A0),vr(vSA),srd(sW)))
    a('s_bitcmp1_b32 s%d, 0'%sw)
    a('s_cbranch_scc1 L_noml')
    for w in range(1,8): a('v_fmac_f32 %s, %s, %s'%(vr(l_),vr(ml+2*w),vr(ml+2*w+1)))
    a('v_min_u32 %s, -2, %s'%(vr(m_),vr(m_)))
    a('v_min_u32 %s, -2, %s'%(vr(l_),vr(l_)))
    a('s_mov_b64 exec, 1')
    a('buffer_store_dwordx2 %s, off, %s, s65 sc1'%(vr(mM,2),srd(sW)))
    a('s_mov_b64 exec, -1')
    a('L_noml:')
    stamp(7)
    a('s_cmp_lg_u32 s%d, %d'%(sw,MW))
    a('s_cbranch_scc1 L_fin')
    a('v_readfirstlane_b32 s62, %s'%vr(vTK))
    a('s_nop 4')
    a('s_cmp_lt_u32 s62, %d'%(64-R))
    a('s_cbranch_scc1 L_fin')
    assert R==16
    a('s_sub_u32 s62, s62, 48')
    a('s_lshr_b32 s72, s62, 2')
    a('s_and_b32 s73, s62, 3')
    a('s_mul_i32 s74, s%d, %d'%(sb,64*REC))
    a('s_lshl_b32 s75, s72, 9'); a('s_add_u32 s74, s74, s75')
    a('s_lshl_b32 s75, s73, 7'); a('s_add_u32 s74, s74, s75')
    a('s_lshl_b32 s76, s%d, 11'%sb); a('s_lshl_b32 s75, s72, 9'); a('s_add_u32 s76, s76, s75'); a('s_add_u32 s76, s76, %d'%MLB)
    for k in range(1,8): a('s_add_u32 s%d, s74, %d'%(76+k,k*REC))
    vL,vJ,vDq,vA,vM=vT0,vT1,vT2,vC,vKV
    a('v_and_b32 %s, 63, v0'%vr(vL))
    a('v_lshrrev_b32 %s, 3, %s'%(vr(vJ),vr(vL)))
    a('v_and_b32 %s, 7, %s'%(vr(vDq),vr(vL)))
    a('v_lshlrev_b32 %s, 3, %s'%(vr(vM),vr(vL)))
    a('v_mul_u32_u24 %s, %d, %s'%(vr(vA),8*REC,vr(vJ)))
    a('v_lshl_add_u32 %s, %s, 4, %s'%(vr(vA),vr(vDq),vr(vA)))
    a('s_lshl_b32 s70, s%d, 2'%sb); a('s_add_u32 s70, s70, s72'); a('s_lshl_b32 s70, s70, 8')
    a('s_lshl_b32 s71, s73, 6'); a('s_add_u32 s70, s70, s71')
    a('v_lshlrev_b32 %s, 3, %s'%(vr(vDq),vr(vDq)))
    a('s_mov_b32 s63, 0x200000')
    a('s_mov_b64 exec, 1')
    a('L_spin:')
    a('buffer_load_dword %s, off, %s, s67 sc1'%(vr(A1),srd(sD)))
    a('s_waitcnt vmcnt(0)')
    a('v_readfirstlane_b32 s84, %s'%vr(A1))
    a('s_sub_u32 s63, s63, 1')
    a('s_cbranch_scc1 L_go')
    a('s_nop 2')
    a('s_cmp_lt_u32 s84, 64')
    a('s_cbranch_scc1 L_spin')
    a('L_go:')
    a('s_mov_b64 exec, -1')
    stamp(8)
    a('s_mov_b32 s63, 0x100000')
    mlall=mM
    a('L_poll:')
    a('buffer_load_dwordx2 %s, %s, %s, s76 offen sc1'%(vr(mlall,2),vr(vM),srd(sW)))
    a('buffer_load_dwordx4 %s, %s, %s, s74 offen sc1'%(vr(rg,4),vr(vA),srd(sW)))
    for k in range(1,8): a('buffer_load_dwordx4 %s, %s, %s, s%d offen sc1'%(vr(rg+4*k,4),vr(vA),srd(sW),76+k))
    a('s_waitcnt vmcnt(6)')
    a('v_max3_u32 %s, %s, %s, %s'%(vr(A0),vr(mlall),vr(mlall+1),vr(rg)))
    a('v_max3_u32 %s, %s, %s, %s'%(vr(A1),vr(rg+1),vr(rg+2),vr(rg+3)))
    def mx(dst,x,y): a('v_max3_u32 %s, %s, %s, %s'%(vr(dst),vr(dst),vr(x),vr(y)))
    mx(A0,rg+4,rg+5); mx(A1,rg+6,rg+7)
    for k in range(2,8):
        a('s_waitcnt vmcnt(%d)'%(7-k))
        mx(A0,rg+4*k,rg+4*k+1); mx(A1,rg+4*k+2,rg+4*k+3)
    a('v_max_u32 %s, %s, %s'%(vr(A0),vr(A0),vr(A1)))
    a('v_cmp_eq_u32 vcc, -1, %s'%vr(A0))
    a('s_sub_u32 s63, s63, 1')
    a('s_cbranch_scc1 L_have')
    a('s_cbranch_vccnz L_poll')
    a('L_have:')
    stamp(10)
    Mx=A0; Tm=A1
    a('v_max_f32_dpp %s, %s, %s row_ror:8%s'%(vr(Mx),vr(mlall),vr(mlall),DP))
    for k in (4,2,1): a('v_max_f32_dpp %s, %s, %s row_ror:%d%s'%(vr(Mx),vr(Mx),vr(Mx),k,DP))
    for sw_ in ('v_permlane16_swap_b32','v_permlane32_swap_b32'):
        a('v_mov_b32 %s, %s'%(vr(Tm),vr(Mx)))
        a('%s %s, %s'%(sw_,vr(Mx),vr(Tm)))
        a('v_max_f32 %s, %s, %s'%(vr(Mx),vr(Mx),vr(Tm)))
    Wg=LOG; Ls=UU
    a('v_sub_f32 %s, %s, %s'%(vr(Wg),vr(mlall),vr(Mx)))
    a('v_exp_f32 %s, %s'%(vr(Wg),vr(Wg)))
    a('s_nop 0')
    a('v_mul_f32 %s, %s, %s'%(vr(Ls),vr(Wg),vr(mlall+1)))
    tk=rg+32
    DL=' row_mask:0xf bank_mask:0x3'; DH=' row_mask:0xf bank_mask:0xc'
    lsops=['v_add_f32_dpp %s, %s, %s row_ror:%d%s'%(vr(Ls),vr(Ls),vr(Ls),k,DP) for k in (8,4,2,1)]
    for k in range(8):
        a('v_mov_b32_dpp %s, %s row_newbcast:%d%s'%(vr(tk+k),vr(Wg),k,DL))
        if k%2==1: a(lsops.pop(0))
    for k in range(8):
        a('v_mov_b32_dpp %s, %s row_newbcast:%d%s'%(vr(tk+k),vr(Wg),8+k,DH))
    for e in range(4): a('v_mul_f32 %s, %s, %s'%(vr(acc+e),vr(tk),vr(rg+e)))
    a('v_mov_b32 %s, %s'%(vr(Tm),vr(Ls)))
    for k in range(1,8):
        for e in range(4): a('v_fmac_f32 %s, %s, %s'%(vr(acc+e),vr(tk+k),vr(rg+4*k+e)))
        if k==1: a('v_permlane16_swap_b32 %s, %s'%(vr(Ls),vr(Tm)))
        if k==2:
            a('v_add_f32 %s, %s, %s'%(vr(Ls),vr(Ls),vr(Tm)))
            a('v_mov_b32 %s, %s'%(vr(Tm),vr(Ls)))
        if k==3: a('v_permlane32_swap_b32 %s, %s'%(vr(Ls),vr(Tm)))
        if k==4: a('v_add_f32 %s, %s, %s'%(vr(Ls),vr(Ls),vr(Tm)))
        if k==5: a('v_rcp_f32 %s, %s'%(vr(Ls),vr(Ls)))
    for e in range(4): a('v_add_f32_dpp %s, %s, %s row_ror:8%s'%(vr(acc+e),vr(acc+e),vr(acc+e),DP))
    for sw_ in ('v_permlane16_swap_b32','v_permlane32_swap_b32'):
        for e in range(4): a('v_mov_b32 %s, %s'%(vr(acc+4+e),vr(acc+e)))
        for e in range(4): a('%s %s, %s'%(sw_,vr(acc+e),vr(acc+4+e)))
        for e in range(4): a('v_add_f32 %s, %s, %s'%(vr(acc+e),vr(acc+e),vr(acc+4+e)))
    for e in range(4): a('v_mul_f32 %s, %s, %s'%(vr(acc+e),vr(acc+e),vr(Ls)))
    a('v_cvt_pk_bf16_f32 %s, %s, %s'%(vr(acc),vr(acc),vr(acc+1)))
    a('v_cvt_pk_bf16_f32 %s, %s, %s'%(vr(acc+1),vr(acc+2),vr(acc+3)))
    a('s_mov_b64 exec, 0xff')
    a('buffer_store_dwordx2 %s, %s, %s, s70 offen %s'%(vr(acc,2),vr(vDq),srd(sO),OPOL))
    a('L_fin:')
    if ST:
        a('s_mov_b64 exec, -1')
        a('s_waitcnt vmcnt(0)')
        stamp(11)
        a('s_getreg_b32 s70, hwreg(HW_REG_HW_ID)'); a('s_getreg_b32 s71, hwreg(HW_REG_XCC_ID, 0, 4)'); a('s_nop 1')
        a('v_writelane_b32 v%d, s70, 15'%vST); a('v_writelane_b32 v%d, s71, 9'%vST)
        a('s_lshl_b32 s70, s2, 3'); a('s_add_u32 s70, s70, s%d'%sw); a('s_lshl_b32 s70, s70, 6'); a('s_add_u32 s70, s70, 0x100000')
        a('v_and_b32 v1, 63, v0'); a('v_lshlrev_b32 v1, 2, v1')
        a('s_mov_b64 exec, 0xffff')
        a('buffer_store_dword v%d, v1, %s, s70 offen'%(vST,srd(sW)))
    a('L_end:')
    a('s_endpgm')
    lines,nn=fix_hazards(o)
    nvg=max((big+7)//8*8,136)
    lds=8*LDSW
    txt=HDR%(256,512,lds)+'\n'+'\n'.join(lines)+'\n'+FTR%(nvg,102,nvg)
    return txt, dict(nops=nn,vgpr=nvg,ninstr=len(lines))

if __name__=='__main__':
    kw={}
    for x in sys.argv[2:]:
        k,v=x.split('='); kw[k]=int(v) if v.lstrip('-').isdigit() else v
    t,info=gen(**kw)
    open(sys.argv[1],'w').write(t); print(info)
```

```python
from asmlib import *
import math, sys, struct

REC=2176
MLB=256*REC
WSZ=MLB+16*64*8
MAPS={
 'yx':['k','w0','w1','w2','x0','x1','x2','y0','y1','y2'],
 'xy':['k','w0','w1','w2','y0','y1','y2','x0','x1','x2'],
 'x4':['x0','x1','x2','k','w0','w1','w2','y0','y1','y2'],
 'x8':['k','x0','x1','x2','w0','w1','w2','y0','y1','y2'],
 'x16':['k','w0','x0','x1','x2','w1','w2','y0','y1','y2'],
 'x32':['k','w0','w1','x0','x1','x2','w2','y0','y1','y2'],
}
INVF=[0x3f800000,0x3f5dafd7,0x3f3ff911,0x3f263de0,0x3f0ff59a,0x3ef953cf,0x3ed7e89b,0x3ebaf81b,0x3ea1e89b,0x3e8c3504,0x3e72d423,0x3e5247ed,0x3e361887,0x3e1db040,0x3e088d77,0x3dec7fd6,
0x3dcccccd,0x3db15978,0x3d99940d,0x3d84fe4d,0x3d6655c2,0x3d47763f,0x3d2cba15,0x3d159348,0x3d0186e3,0x3ce054d2,0x3cc2434f,0x3ca8398b,0x3c91ad39,0x3c7c4d33,0x3c5a7bf2,0x3c3d3311,
0x3c23d70a,0x3c0de12d,0x3bf5b9b0,0x3bd4ca15,0x3bb8449c,0x3b9f91cc,0x3b8a2e77,0x3b6f520e,0x3b4f3e38,0x3b33770f,0x3b1b690d,0x3b06946f,0x3ae91528,0x3ac9d75c,0x3aaec98e,0x3a975c0e,
0x3a83126f,0x3a6301e2,0x3a44948c,0x3a2a3b44,0x3a136a16,0x39ff4fac,0x39dd1725,0x39bf74d7,0x39a5cb60,0x398f9272,0x3978a815,0x395753e4,0x393a7753,0x39217916,0x390bd472,0x38f22ce2]
def bitrev4(x): return ((x&1)<<3)|((x&2)<<1)|((x&4)>>1)|((x&8)>>3)

def gen(POL='nt', NS=16, CPOL='', SPOL='', tb='s0 s1 x0 s2 s3 x1 x2 w0 w1 w2 y0 y1 y2', RX=1, ST=0, TK=10, MW=7, R=16, bm='mid', xm='', HALF=1, OPOL='', KF=0, GEN=1):
    o=[]; a=o.append
    NT=16
    tb=tb.split()
    assert sorted(tb)==sorted(['s0','s1','s2','s3','w0','w1','w2','x0','x1','x2','y0','y1','y2']) and tb[0]=='s0' and tb[1]=='s1'
    p2,p3=tb.index('s2'),tb.index('s3')
    assert HALF==1 and p3>=2
    sK,sV,sC,sS,sQ,sKS,sKZ,sVS,sVZ,sQC,sQS,sO,sD,sW=4,8,12,16,20,24,28,32,36,40,44,48,52,56
    sw,sb,sg,soA,soB,sT,sT2,sel0,sel1,sBlk,sQo,sSo,sDo,sLb=88,89,90,91,92,93,94,95,96,97,98,99,100,101
    def srd(n): return 's[%d:%d]'%(n,n+3)
    nv=[1]
    def V(n=1,al=1):
        x=(nv[0]+al-1)//al*al; nv[0]=x+n; return x
    def vr(x,n=1): return 'v%d'%x if n==1 else 'v[%d:%d]'%(x,x+n-1)
    vKV=V(4); vC=V(4); vT0=V(); vT1=V(); vI=V(); vRr=V(); vT2=V()
    P1=V(4,2); P2=V(4,2)
    Cb=V(8,4); X=V(8,2)
    zk0=V();zk1=V();sk0=V();sk1=V();zv0=V();zv1=V();sv0=V();sv1=V()
    A0=V();A1=V();UU=V();LOG=V()
    UA=V();UB=V();R1=[V(),V()];R2=[V(),V()];R3=[V(),V()];T3=V();T4=V()
    T34=V(4,4)
    acc=V(8,4)
    a0=V();a1=V();mM=V(2,2);c0=V();c1=V()
    vTK=V(); vST=V()
    vWA=V(); vWM=V(); vRM=V(); vSA=V()
    ring=V(8*NS,4)
    big=max(nv[0],ring+48)
    DP=' row_mask:0xf bank_mask:0xf'
    LDSW=8192 if not HALF else 4096
    def stamp(k):
        if not ST: return
        a('s_memrealtime s[0:1]'); a('s_waitcnt lgkmcnt(0)'); a('v_writelane_b32 v%d, s0, %d'%(vST,k))
    issued=[]
    def vm(text,tag): a(text); issued.append(tag)
    def wait_vm(tag):
        idx=max(i for i,t in enumerate(issued) if t==tag); n=len(issued)-1-idx
        assert n<=63
        a('s_waitcnt vmcnt(%d)'%n)
    a('s_load_dwordx16 s[60:75], s[0:1], 0')
    a('s_load_dwordx8 s[76:83], s[0:1], 64')
    a('s_load_dwordx4 s[84:87], s[0:1], 96')
    if ST: a('s_memrealtime s[0:1]')
    a('s_cmp_ge_u32 s2, 256')
    a('s_cbranch_scc1 L_end')
    a('v_lshrrev_b32 %s, 6, v0'%vr(vT0))
    a('v_and_b32 %s, 15, v0'%vr(vI))
    a('v_readfirstlane_b32 s%d, %s'%(sw,vr(vT0)))
    a('v_bfe_u32 %s, v0, 4, 2'%vr(vRr))
    if xm:
        cols=[int(v,16) for v in xm.split(':')]
        a('s_mov_b32 s4, 0')
        for bit,cm in enumerate(cols):
            a('s_bfe_i32 s5, s2, 0x%x'%((1<<16)|bit)); a('s_and_b32 s5, s5, 0x%x'%cm); a('s_xor_b32 s4, s4, s5')
        a('s_mov_b32 s3, s4')
    else: a('s_mov_b32 s3, s2')
    if bm=='mid':
        a('s_and_b32 s%d, s3, 7'%sT)
        a('s_bfe_u32 s%d, s3, 0x20003'%sb)
    else:
        a('s_and_b32 s%d, s3, 3'%sb)
        a('s_bfe_u32 s%d, s3, 0x30002'%sT)
    a('s_lshr_b32 s%d, s3, 5'%sT2)
    a('s_lshl_b32 s%d, s%d, 3'%(sg,sT2)); a('s_add_u32 s%d, s%d, s%d'%(sg,sg,sT))
    sizes={sK:64<<20,sV:64<<20,sC:2<<20,sS:2<<20,sQ:4096,sKS:512<<10,sKZ:512<<10,sVS:512<<10,sVZ:512<<10,sQC:256,sQS:256,sO:4096,sD:256,sW:(WSZ if not ST else (2<<20))}
    for n,sz in sizes.items():
        a('s_mov_b32 s%d, 0x%x'%(n+2,sz)); a('s_mov_b32 s%d, 0x20000'%(n+3))
    a('s_mov_b32 s%d, 0'%sBlk)
    pos=0
    while pos<13:
        src=tb[pos]
        if src[0]=='s': pos+=1; continue
        f=src[0]; b0=int(src[1]); n=1
        while pos+n<13 and tb[pos+n][0]==f and int(tb[pos+n][1])==b0+n: n+=1
        reg={'w':sw,'x':sT,'y':sT2}[f]
        a('s_bfe_u32 s%d, s%d, 0x%x'%(sQo,reg,(n<<16)|b0))
        a('s_lshl_b32 s%d, s%d, %d'%(sQo,sQo,pos))
        a('s_or_b32 s%d, s%d, s%d'%(sBlk,sBlk,sQo))
        pos+=n
    vQo,vQc,vSo,vD=X,X+1,X+2,X+3
    tA,tB=X+4,X+5
    a('v_lshlrev_b32 %s, 4, %s'%(vr(vT1),vr(vI)))
    a('v_lshl_add_u32 %s, %s, 22, %s'%(vr(vT1),vr(vRr),vr(vT1)))
    a('v_lshlrev_b32 %s, 3, %s'%(vr(vQc),vr(vI)))
    a('s_lshl_b32 s%d, s%d, 12'%(sLb,sw))
    for hi in range(4):
        if RX: a('v_xor_b32 %s, %d, %s'%(vr(tA),hi,vr(vRr)))
        else:  a('v_mov_b32 %s, %d'%(vr(tA),hi))
        if GEN:
            a('v_lshlrev_b32 %s, 4, %s'%(vr(tB),vr(vI)))
            a('v_lshl_add_u32 %s, %s, 10, %s'%(vr(vC+hi),vr(tA),vr(tB)))
        else:
            a('v_lshl_add_u32 %s, %s, 9, %s'%(vr(vC+hi),vr(tA),vr(vQc)))
        a('v_add_u32 %s, s%d, %s'%(vr(vC+hi),sLb,vr(vC+hi)))
        a('v_and_b32 %s, 1, %s'%(vr(tB),vr(tA)))
        a('v_lshl_add_u32 %s, %s, %d, %s'%(vr(vKV+hi),vr(tB),9+p2,vr(vT1)))
        a('v_lshrrev_b32 %s, 1, %s'%(vr(tB),vr(tA)))
        a('v_lshl_add_u32 %s, %s, %d, %s'%(vr(vKV+hi),vr(tB),9+p3,vr(vKV+hi)))
    a('v_lshl_add_u32 %s, %s, 8, %s'%(vr(vQo),vr(vRr),vr(vQc)))
    a('v_bfrev_b32 %s, %s'%(vr(vD),vr(vI)))
    a('v_lshrrev_b32 %s, 28, %s'%(vr(vD),vr(vD)))
    if RX:
        a('v_lshlrev_b32 %s, 2, %s'%(vr(tA),vr(vRr)))
        a('v_xor_b32 %s, %s, %s'%(vr(vD),vr(vD),vr(tA)))
    a('v_and_b32 %s, 3, %s'%(vr(vSo),vr(vD)))
    a('v_lshlrev_b32 %s, 2, %s'%(vr(vSo),vr(vSo)))
    a('v_bfe_u32 %s, %s, 2, 1'%(vr(tA),vr(vD)))
    a('v_lshl_add_u32 %s, %s, %d, %s'%(vr(vSo),vr(tA),2+p2,vr(vSo)))
    a('v_lshrrev_b32 %s, 3, %s'%(vr(tA),vr(vD)))
    a('v_lshl_add_u32 %s, %s, %d, %s'%(vr(vSo),vr(tA),2+p3,vr(vSo)))
    a('v_lshl_add_u32 %s, %s, 15, %s'%(vr(vSo),vr(vRr),vr(vSo)))
    a('v_and_b32 %s, 63, v0'%vr(vT2))
    a('v_lshlrev_b32 %s, 4, %s'%(vr(vSA),vr(vT2)))
    a('v_bfe_u32 %s, %s, 3, 2'%(vr(tA),vr(vT2)))
    a('v_and_b32 %s, 7, %s'%(vr(vD),vr(vT2)))
    a('v_lshlrev_b32 %s, 4, %s'%(vr(vD),vr(vD)))
    a('v_lshl_add_u32 %s, %s, 8, %s'%(vr(vD),vr(tA),vr(vD)))
    a('v_lshrrev_b32 %s, 5, %s'%(vr(tA),vr(vT2)))
    a('v_lshl_add_u32 %s, %s, %d, %s'%(vr(vD),vr(tA),8+p2,vr(vD)))
    a('s_lshl_b32 s%d, s%d, 24'%(soA,sb))
    a('s_lshl_b32 s%d, s%d, 9'%(sT,sBlk))
    a('s_add_u32 s%d, s%d, s%d'%(soA,soA,sT))
    a('s_lshl_b32 s%d, s%d, 10'%(sQo,sb))
    a('s_lshl_b32 s%d, s%d, 17'%(sSo,sb))
    a('s_lshl_b32 s%d, s%d, 2'%(sT,sBlk))
    a('s_add_u32 s%d, s%d, s%d'%(sSo,sSo,sT))
    a('s_lshl_b32 s%d, s%d, 8'%(sDo,sBlk))
    a('s_mov_b32 s%d, 0x05040100'%sel0)
    a('s_mov_b32 s%d, 0x07060302'%sel1)
    if not GEN: a('s_mov_b32 m0, s%d'%sLb)
    if not GEN: a('s_add_u32 s%d, s%d, %d'%(sBlk,sDo,(256<<p3)-1024))
    if ST: a('v_mov_b32 v%d, 0'%vST)
    a('s_waitcnt lgkmcnt(0)')
    if ST: a('v_writelane_b32 v%d, s0, 0'%vST)
    stamp(1)
    mv={sQ:60,sK:62,sKS:64,sKZ:66,sV:68,sVS:70,sVZ:72,sQC:74,sQS:76,sC:78,sS:80,sO:82,sD:84,sW:86}
    NL=2*NT
    def issue(j):
        slot=ring+8*(j%NS); s=j%NT; base=sK if j<NT else sV
        off=(s%4)*512; tag='L%d'%j
        vm('buffer_load_dwordx4 %s, %s, %s, s%d offen offset:%d %s'%(vr(slot,4),vr(vKV+(s>>2)),srd(base),soA,off,POL),tag)
        vm('buffer_load_dwordx4 %s, %s, %s, s%d offen offset:%d %s'%(vr(slot+4,4),vr(vKV+(s>>2)),srd(base),soA,off+256,POL),tag)
    def mov(n): a('s_mov_b64 s[%d:%d], s[%d:%d]'%(n,n+1,mv[n],mv[n]+1))
    mov(sK)
    for j in range(KF): issue(j)
    for n in ((sQ,sQC,sQS,sKS,sKZ,sVS,sVZ) if GEN else (sQ,sQC,sQS,sKS,sKZ,sVS,sVZ,sC,sS)): mov(n)
    vm('buffer_load_dwordx2 %s, %s, %s, s%d offen'%(vr(P1,2),vr(vQo),srd(sQ),sQo),'q')
    vm('buffer_load_dwordx2 %s, %s, %s, s%d offen offset:128'%(vr(P1+2,2),vr(vQo),srd(sQ),sQo),'q')
    vm('buffer_load_dwordx2 %s, %s, %s, 0 offen'%(vr(Cb,2),vr(vQc),srd(sQC)),'q')
    vm('buffer_load_dwordx2 %s, %s, %s, 0 offen offset:128'%(vr(Cb+2,2),vr(vQc),srd(sQC)),'q')
    vm('buffer_load_dwordx2 %s, %s, %s, 0 offen'%(vr(Cb+4,2),vr(vQc),srd(sQS)),'q')
    vm('buffer_load_dwordx2 %s, %s, %s, 0 offen offset:128'%(vr(Cb+6,2),vr(vQc),srd(sQS)),'q')
    vm('buffer_load_dword %s, %s, %s, s%d offen %s'%(vr(sk1),vr(vSo),srd(sKS),sSo,SPOL),'sc')
    vm('buffer_load_dword %s, %s, %s, s%d offen %s'%(vr(zk1),vr(vSo),srd(sKZ),sSo,SPOL),'sc')
    vm('buffer_load_dword %s, %s, %s, s%d offen %s'%(vr(sv1),vr(vSo),srd(sVS),sSo,SPOL),'sc')
    vm('buffer_load_dword %s, %s, %s, s%d offen %s'%(vr(zv1),vr(vSo),srd(sVZ),sSo,SPOL),'sc')
    if not GEN:
        for t,tbl in enumerate((sC,sS)):
            if t:
                a('s_add_u32 s%d, s%d, %d'%(sT,sLb,LDSW//2)); a('s_mov_b32 m0, s%d'%sT)
            for k in range(2):
                vm('buffer_load_dwordx4 %s, %s, s%d offen offset:%d %s lds'%(vr(vD),srd(tbl),sDo if k<1 else sBlk,k*1024,CPOL),'dma')
    for j in range(KF,min(NS,NL)): issue(j)
    for n in (sV,sW,sO,sD): mov(n)
    a('s_lshl_b32 s64, s%d, 6'%sb); a('s_add_u32 s64, s64, s%d'%sg); a('s_mul_i32 s64, s64, %d'%REC)
    a('s_lshl_b32 s65, s%d, 11'%sb); a('s_lshl_b32 s66, s%d, 3'%sg); a('s_add_u32 s65, s65, s66'); a('s_add_u32 s65, s65, %d'%MLB)
    a('s_lshl_b32 s67, s%d, 6'%sb)
    a('s_cmp_lg_u32 s%d, %d'%(sw,MW))
    a('s_cbranch_scc1 L_nomark')
    for k in range(4): a('v_mov_b32 %s, -1'%vr(acc+k))
    a('buffer_store_dwordx4 %s, %s, %s, s64 offen sc1'%(vr(acc,4),vr(vSA),srd(sW)))
    a('buffer_store_dwordx4 %s, %s, %s, s64 offen offset:1024 sc1'%(vr(acc,4),vr(vSA),srd(sW)))
    a('v_lshlrev_b32 %s, 5, %s'%(vr(vT2),vr(vSA)))
    a('s_mov_b64 exec, 15')
    a('buffer_store_dwordx2 %s, %s, %s, s65 offen sc1'%(vr(acc,2),vr(vT2),srd(sW)))
    a('s_mov_b64 exec, -1')
    a('s_nop 1')
    a('L_nomark:')
    mark_pos=len(issued)
    a('v_lshlrev_b32 %s, 4, %s'%(vr(vWA),vr(vI)))
    a('v_lshl_add_u32 %s, %s, 9, %s'%(vr(vWA),vr(vRr),vr(vWA)))
    a('v_add_u32 %s, s%d, %s'%(vr(vWA),sLb,vr(vWA)))
    a('v_lshlrev_b32 %s, 3, %s'%(vr(vWM),vr(vRr)))
    a('v_add_u32 %s, 2048, %s'%(vr(vWM),vr(vWM)))
    a('v_add_u32 %s, s%d, %s'%(vr(vWM),sLb,vr(vWM)))
    a('v_and_b32 %s, 63, v0'%vr(vT2))
    a('v_lshlrev_b32 %s, 2, %s'%(vr(vT2),vr(vT2)))
    a('s_lshl_b32 s68, s%d, 8'%sw)
    a('v_add_u32 %s, s68, %s'%(vr(vSA),vr(vT2)))
    a('s_lshr_b32 s69, s%d, 1'%sw)
    a('s_lshl_b32 s70, s69, 3'); a('s_add_u32 s70, s70, 2048')
    a('v_mov_b32 %s, s70'%vr(vRM))
    a('s_lshl_b32 s70, s69, 9'); a('s_add_u32 s65, s65, s70')
    a('v_mov_b32 %s, 1'%vr(vTK))
    if GEN:
        INV=[acc+0,acc+1,acc+2,acc+3]
        a('s_mov_b32 s60, 0x00010001'); a('s_mov_b32 s61, 0x00010001')
        for i in range(16):
            a('s_lshl_b64 exec, s[60:61], %d'%i)
            for j in range(4): a('v_mov_b32 %s, 0x%08x'%(vr(INV[j]),INVF[4*i+j]))
        a('s_mov_b64 exec, -1')
        a('s_mov_b32 s62, 0x3e22f983'); a('s_mov_b32 s63, 0x31dc9c88')
        tf=acc+4; ang=[A0,A1,UU,LOG]; nn_=[UA,UB,R1[0],R1[1]]; fr=[R2[0],R2[1],R3[0],R3[1]]
        a('v_lshlrev_b32 %s, 4, %s'%(vr(acc+5),vr(vI)))
        a('v_lshl_add_u32 %s, %s, 8, %s'%(vr(acc+5),vr(vRr),vr(acc+5)))
        a('v_add_u32 %s, s%d, %s'%(vr(acc+5),sLb,vr(acc+5)))
        for k in range(4):
            a('s_add_u32 s%d, s%d, %d'%(sT,sBlk,((k&1)<<p2)|((k>>1)<<p3)))
            a('v_add_u32 %s, s%d, %s'%(vr(tf),sT,vr(vRr)))
            a('v_cvt_f32_u32 %s, %s'%(vr(tf),vr(tf)))
            for j in range(4): a('v_mul_f32 %s, %s, %s'%(vr(ang[j]),vr(tf),vr(INV[j])))
            for j in range(4): a('v_mul_f32 %s, s62, %s'%(vr(nn_[j]),vr(ang[j])))
            for j in range(4): a('v_rndne_f32 %s, %s'%(vr(nn_[j]),vr(nn_[j])))
            for j in range(4): a('v_fma_f32 %s, %s, s62, -%s'%(vr(fr[j]),vr(ang[j]),vr(nn_[j])))
            for j in range(4): a('v_fma_f32 %s, %s, s63, %s'%(vr(fr[j]),vr(ang[j]),vr(fr[j])))
            for j in range(4):
                a('v_cos_f32 %s, %s'%(vr(ang[j]),vr(fr[j])))
                a('v_sin_f32 %s, %s'%(vr(nn_[j]),vr(fr[j])))
            G4=ring+8*(NS-1) if False else T34
            for j in range(4): a('v_cvt_pk_bf16_f32 %s, %s, %s'%(vr(G4+j),vr(ang[j]),vr(nn_[j])))
            a('ds_write_b128 %s, %s offset:%d'%(vr(acc+5),vr(G4,4),k*1024))
    wait_vm('q')
    stamp(2)
    t=[acc+k for k in range(8)]+[A0,A1,UU,LOG,a0,a1,c0,c1]
    ql,qh,cl,ch,sl,sh,t1,t2,t3,t4=t[0:10]
    res=[X+4,X+5,X+6,X+7, mM,mM+1, t[10],t[11]]
    def unpack(dst,src,j):
        r=src+(j>>1)
        if j&1: a('v_and_b32 %s, 0xffff0000, %s'%(vr(dst),vr(r)))
        else:   a('v_lshlrev_b32 %s, 16, %s'%(vr(dst),vr(r)))
    for j in range(4):
        unpack(ql,P1,j); unpack(qh,P1+2,j); unpack(cl,Cb,j); unpack(ch,Cb+2,j); unpack(sl,Cb+4,j); unpack(sh,Cb+6,j)
        a('v_mul_f32 %s, %s, %s'%(vr(t1),vr(ql),vr(cl)))
        a('v_mul_f32 %s, %s, %s'%(vr(t2),vr(qh),vr(sl)))
        a('v_mul_f32 %s, %s, %s'%(vr(t3),vr(qh),vr(ch)))
        a('v_mul_f32 %s, %s, %s'%(vr(t4),vr(ql),vr(sh)))
        a('v_cvt_pk_bf16_f32 %s, %s, %s'%(vr(t1),vr(t1),vr(t2)))
        a('v_cvt_pk_bf16_f32 %s, %s, %s'%(vr(t3),vr(t3),vr(t4)))
        a('v_and_b32 %s, 0xffff0000, %s'%(vr(t2),vr(t1)))
        a('v_lshlrev_b32 %s, 16, %s'%(vr(t1),vr(t1)))
        a('v_and_b32 %s, 0xffff0000, %s'%(vr(t4),vr(t3)))
        a('v_lshlrev_b32 %s, 16, %s'%(vr(t3),vr(t3)))
        a('v_sub_f32 %s, %s, %s'%(vr(res[j]),vr(t1),vr(t2)))
        a('v_add_f32 %s, %s, %s'%(vr(res[4+j]),vr(t3),vr(t4)))
    for j in range(4):
        a('v_cvt_pk_bf16_f32 %s, %s, %s'%(vr(P1+j),vr(res[j]),vr(res[4+j])))
        a('v_cvt_pk_bf16_f32 %s, %s, -%s'%(vr(P2+j),vr(res[4+j]),vr(res[j])))
    wait_vm('sc')
    for hi,lo in ((sk1,sk0),(zk1,zk0),(sv1,sv0),(zv1,zv0)):
        a('v_lshlrev_b32 %s, 16, %s'%(vr(lo),vr(hi)))
        a('v_and_b32 %s, 0xffff0000, %s'%(vr(hi),vr(hi)))
    a('s_mov_b32 s60, 0xcccccccc'); a('s_mov_b32 s61, 0xcccccccc')
    a('s_mov_b32 s62, 0xaaaaaaaa'); a('s_mov_b32 s63, 0xaaaaaaaa')
    if not GEN: wait_vm('dma')
    else: a('s_waitcnt lgkmcnt(0)')
    def csread(s):
        if GEN:
            a('ds_read_b128 %s, %s offset:%d'%(vr(Cb,4),vr(vC+(s>>2)),(s&3)*256))
        elif HALF:
            a('ds_read_b64 %s, %s offset:%d'%(vr(Cb,2),vr(vC+(s>>2)),(s&3)*128))
            a('ds_read_b64 %s, %s offset:%d'%(vr(Cb+2,2),vr(vC+(s>>2)),2048+(s&3)*128))
        else:
            a('ds_read_b64 %s, %s offset:%d'%(vr(Cb,2),vr(vC),s*256))
            a('ds_read_b64 %s, %s offset:%d'%(vr(Cb+2,2),vr(vC),s*256+128))
            a('ds_read_b64 %s, %s offset:%d'%(vr(Cb+4,2),vr(vC),4096+s*256))
            a('ds_read_b64 %s, %s offset:%d'%(vr(Cb+6,2),vr(vC),4096+s*256+128))
    csread(0)
    def ticket():
        a('s_cmp_lg_u32 s%d, %d'%(sw,MW))
        a('s_cbranch_scc1 L_notk')
        a('s_waitcnt vmcnt(%d)'%min(63,len(issued)-mark_pos))
        a('s_mov_b64 exec, 1')
        a('buffer_atomic_add %s, off, %s, s67 sc0 sc1'%(vr(vTK),srd(sD)))
        a('s_mov_b64 exec, -1')
        a('L_notk:')
    def dpp(op,d,x,ctl,bank=0xf): return '%s %s, %s, %s %s row_mask:0xf bank_mask:0x%x'%(op,vr(d),vr(x),vr(x),ctl,bank)
    def merges(s):
        ops=[]
        if s&1==0: return ops
        r1=R1[(s>>1)&1]
        ops.append(dpp('v_add_f32_dpp',r1,UA,'row_ror:8',0x3))
        ops.append(dpp('v_add_f32_dpp',r1,UB,'row_ror:8',0xc))
        if s&3==3:
            r2=R2[(s>>2)&1]
            ops.append(dpp('v_add_f32_dpp',r2,R1[0],'row_half_mirror',0x5))
            ops.append(dpp('v_add_f32_dpp',r2,R1[1],'row_half_mirror',0xa))
            if s&7==7:
                r3=R3[(s>>3)&1]
                ops.append(dpp('v_add_f32_dpp',T3,R2[0],'quad_perm:[2,3,0,1]'))
                ops.append(dpp('v_add_f32_dpp',T4,R2[1],'quad_perm:[2,3,0,1]'))
                ops.append('v_cndmask_b32 %s, %s, %s, s[60:61]'%(vr(r3),vr(T3),vr(T4)))
                if s==15:
                    ops.append(dpp('v_add_f32_dpp',T3,R3[0],'quad_perm:[1,0,3,2]'))
                    ops.append(dpp('v_add_f32_dpp',T4,R3[1],'quad_perm:[1,0,3,2]'))
                    ops.append('v_cndmask_b32 %s, %s, %s, s[62:63]'%(vr(LOG),vr(T3),vr(T4)))
        return ops
    pend=[]
    for s in range(NT):
        slot=ring+8*(s%NS); ls=bitrev4(s)
        a('s_waitcnt lgkmcnt(0)')
        if GEN:
            dots=[]
            for j in range(4): dots.append('v_dot2_f32_bf16 %s, %s, %s, 0'%(vr(X+4+j),vr(Cb+j),vr(P2+j)))
            for j in range(4): dots.append('v_dot2_f32_bf16 %s, %s, %s, 0'%(vr(X+j),vr(Cb+j),vr(P1+j)))
            for k,p in enumerate(dots):
                a(p)
                if k%2==1 and pend: a(pend.pop(0))
            if s+1<NT: csread(s+1)
        else:
            perms=[]
            for j in range(4):
                perms.append('v_perm_b32 %s, %s, %s, s%d'%(vr(X+j),vr(Cb+2+(j>>1)),vr(Cb+(j>>1)),sel1 if j&1 else sel0))
            for k,p in enumerate(perms):
                a(p)
                if k%2==1 and pend: a(pend.pop(0))
            if s+1<NT: csread(s+1)
            dots=[]
            for j in range(4): dots.append('v_dot2_f32_bf16 %s, %s, %s, 0'%(vr(X+4+j),vr(X+j),vr(P2+j)))
            for j in range(4): dots.append('v_dot2_f32_bf16 %s, %s, %s, 0'%(vr(X+j),vr(X+j),vr(P1+j)))
            for k,p in enumerate(dots):
                a(p)
                if k%2==1 and pend: a(pend.pop(0))
        wait_vm('L%d'%s)
        if s==0: stamp(3)
        if s==8: stamp(12)
        if s==TK: ticket()
        for j in range(8):
            a('v_cvt_f32_i32 %s, %s'%(vr(slot+j),vr(slot+j)))
            if j%2==1 and pend: a(pend.pop(0))
        while pend: a(pend.pop(0))
        for j in range(8):
            a('v_subrev_f32_dpp %s, %s, %s row_newbcast:%d%s'%(vr(slot+j),vr(zk0 if j<4 else zk1),vr(slot+j),ls,DP))
        a('v_mul_f32 %s, %s, %s'%(vr(A0),vr(slot),vr(X)))
        a('v_mul_f32 %s, %s, %s'%(vr(A1),vr(slot+4),vr(X+4)))
        a('v_fmac_f32 %s, %s, %s'%(vr(A0),vr(slot+1),vr(X+1)))
        a('v_fmac_f32 %s, %s, %s'%(vr(A1),vr(slot+5),vr(X+5)))
        a('v_fmac_f32 %s, %s, %s'%(vr(A0),vr(slot+2),vr(X+2)))
        a('v_fmac_f32 %s, %s, %s'%(vr(A0),vr(slot+3),vr(X+3)))
        a('v_fmac_f32 %s, %s, %s'%(vr(A1),vr(slot+6),vr(X+6)))
        a('v_fmac_f32 %s, %s, %s'%(vr(A1),vr(slot+7),vr(X+7)))
        U=UB if s&1 else UA
        a('v_mul_f32_dpp %s, %s, %s row_newbcast:%d%s'%(vr(U),vr(sk0),vr(A0),ls,DP))
        if s+NS<NL: issue(s+NS)
        a('v_fmac_f32_dpp %s, %s, %s row_newbcast:%d%s'%(vr(U),vr(sk1),vr(A1),ls,DP))
        pend=merges(s)
    while pend: a(pend.pop(0))
    stamp(4)
    c=math.log2(math.e)/math.sqrt(128.0)
    cbits=struct.unpack('<I',struct.pack('<f',c))[0]
    m_,l_=mM,mM+1
    a('v_mul_f32 %s, 0x%08x, %s'%(vr(LOG),cbits,vr(LOG)))
    a('v_max_f32_dpp %s, %s, %s row_ror:8%s'%(vr(m_),vr(LOG),vr(LOG),DP))
    for k in (4,2,1): a('v_max_f32_dpp %s, %s, %s row_ror:%d%s'%(vr(m_),vr(m_),vr(m_),k,DP))
    a('v_sub_f32 %s, %s, %s'%(vr(l_),vr(LOG),vr(m_)))
    a('v_exp_f32 %s, %s'%(vr(l_),vr(l_)))
    a('s_nop 0')
    a('v_mul_f32 %s, %s, %s'%(vr(a0),vr(l_),vr(sv0)))
    a('v_mul_f32 %s, %s, %s'%(vr(a1),vr(l_),vr(sv1)))
    a('v_mul_f32 %s, %s, %s'%(vr(c0),vr(a0),vr(zv0)))
    a('v_mul_f32 %s, %s, %s'%(vr(c1),vr(a1),vr(zv1)))
    for k in (8,4,2,1):
        for x in (l_,c0,c1): a('v_add_f32_dpp %s, %s, %s row_ror:%d%s'%(vr(x),vr(x),vr(x),k,DP))
    a('ds_write_b64 %s, %s'%(vr(vWM),vr(mM,2)))
    for k in range(8): a('v_sub_f32 %s, 0, %s'%(vr(acc+k),vr(c0 if k<4 else c1)))
    for s in range(NT):
        j=NT+s; slot=ring+8*(j%NS); ls=bitrev4(s)
        wait_vm('L%d'%j)
        if s==0: stamp(13)
        if s==8: stamp(14)
        if j==TK: ticket()
        for k in range(8): a('v_cvt_f32_i32 %s, %s'%(vr(slot+k),vr(slot+k)))
        for k in range(8):
            a('v_fmac_f32_dpp %s, %s, %s row_newbcast:%d%s'%(vr(acc+k),vr(a0 if k<4 else a1),vr(slot+k),ls,DP))
        if j+NS<NL: issue(j+NS)
    stamp(5)
    a('ds_write_b128 %s, %s'%(vr(vWA),vr(acc,4)))
    a('ds_write_b128 %s, %s offset:256'%(vr(vWA),vr(acc+4,4)))
    a('s_waitcnt lgkmcnt(0)')
    a('s_barrier')
    stamp(6)
    rg=ring; ml=rg+16
    for w in range(8): a('ds_read_b64 %s, %s offset:%d'%(vr(ml+2*w,2),vr(vRM),w*LDSW))
    for w in range(8): a('ds_read_b32 %s, %s offset:%d'%(vr(rg+w),vr(vSA),w*LDSW))
    a('s_waitcnt lgkmcnt(8)')
    a('v_max3_f32 %s, %s, %s, %s'%(vr(m_),vr(ml),vr(ml+2),vr(ml+4)))
    a('v_max3_f32 %s, %s, %s, %s'%(vr(A0),vr(ml+6),vr(ml+8),vr(ml+10)))
    a('v_max3_f32 %s, %s, %s, %s'%(vr(m_),vr(m_),vr(ml+12),vr(ml+14)))
    a('v_max_f32 %s, %s, %s'%(vr(m_),vr(m_),vr(A0)))
    for w in range(8): a('v_sub_f32 %s, %s, %s'%(vr(ml+2*w),vr(ml+2*w),vr(m_)))
    for w in range(8): a('v_exp_f32 %s, %s'%(vr(ml+2*w),vr(ml+2*w)))
    a('s_waitcnt lgkmcnt(0)')
    a('v_mul_f32 %s, %s, %s'%(vr(A0),vr(ml),vr(rg)))
    a('v_mul_f32 %s, %s, %s'%(vr(A1),vr(ml+2),vr(rg+1)))
    a('v_mul_f32 %s, %s, %s'%(vr(l_),vr(ml),vr(ml+1)))
    for w in range(2,8,2):
        a('v_fmac_f32 %s, %s, %s'%(vr(A0),vr(ml+2*w),vr(rg+w)))
        a('v_fmac_f32 %s, %s, %s'%(vr(A1),vr(ml+2*w+2),vr(rg+w+1)))
    a('v_add_f32 %s, %s, %s'%(vr(A0),vr(A0),vr(A1)))
    a('v_min_u32 %s, -2, %s'%(vr(A0),vr(A0)))
    a('buffer_store_dword %s, %s, %s, s64 offen sc1'%(vr(A0),vr(vSA),srd(sW)))
    a('s_bitcmp1_b32 s%d, 0'%sw)
    a('s_cbranch_scc1 L_noml')
    for w in range(1,8): a('v_fmac_f32 %s, %s, %s'%(vr(l_),vr(ml+2*w),vr(ml+2*w+1)))
    a('v_min_u32 %s, -2, %s'%(vr(m_),vr(m_)))
    a('v_min_u32 %s, -2, %s'%(vr(l_),vr(l_)))
    a('s_mov_b64 exec, 1')
    a('buffer_store_dwordx2 %s, off, %s, s65 sc1'%(vr(mM,2),srd(sW)))
    a('s_mov_b64 exec, -1')
    a('L_noml:')
    stamp(7)
    a('s_cmp_lg_u32 s%d, %d'%(sw,MW))
    a('s_cbranch_scc1 L_fin')
    a('v_readfirstlane_b32 s62, %s'%vr(vTK))
    a('s_nop 4')
    a('s_cmp_lt_u32 s62, %d'%(64-R))
    a('s_cbranch_scc1 L_fin')
    assert R==16
    a('s_sub_u32 s62, s62, 48')
    a('s_lshr_b32 s72, s62, 2')
    a('s_and_b32 s73, s62, 3')
    a('s_mul_i32 s74, s%d, %d'%(sb,64*REC))
    a('s_lshl_b32 s75, s72, 9'); a('s_add_u32 s74, s74, s75')
    a('s_lshl_b32 s75, s73, 7'); a('s_add_u32 s74, s74, s75')
    a('s_lshl_b32 s76, s%d, 11'%sb); a('s_lshl_b32 s75, s72, 9'); a('s_add_u32 s76, s76, s75'); a('s_add_u32 s76, s76, %d'%MLB)
    for k in range(1,8): a('s_add_u32 s%d, s74, %d'%(76+k,k*REC))
    vL,vJ,vDq,vA,vM=vT0,vT1,vT2,vC,vKV
    a('v_and_b32 %s, 63, v0'%vr(vL))
    a('v_lshrrev_b32 %s, 3, %s'%(vr(vJ),vr(vL)))
    a('v_and_b32 %s, 7, %s'%(vr(vDq),vr(vL)))
    a('v_lshlrev_b32 %s, 3, %s'%(vr(vM),vr(vL)))
    a('v_mul_u32_u24 %s, %d, %s'%(vr(vA),8*REC,vr(vJ)))
    a('v_lshl_add_u32 %s, %s, 4, %s'%(vr(vA),vr(vDq),vr(vA)))
    a('s_lshl_b32 s70, s%d, 2'%sb); a('s_add_u32 s70, s70, s72'); a('s_lshl_b32 s70, s70, 8')
    a('s_lshl_b32 s71, s73, 6'); a('s_add_u32 s70, s70, s71')
    a('v_lshlrev_b32 %s, 3, %s'%(vr(vDq),vr(vDq)))
    a('s_mov_b32 s63, 0x200000')
    a('s_mov_b64 exec, 1')
    a('L_spin:')
    a('buffer_load_dword %s, off, %s, s67 sc1'%(vr(A1),srd(sD)))
    a('s_waitcnt vmcnt(0)')
    a('v_readfirstlane_b32 s84, %s'%vr(A1))
    a('s_sub_u32 s63, s63, 1')
    a('s_cbranch_scc1 L_go')
    a('s_nop 2')
    a('s_cmp_lt_u32 s84, 64')
    a('s_cbranch_scc1 L_spin')
    a('L_go:')
    a('s_mov_b64 exec, -1')
    stamp(8)
    a('s_mov_b32 s63, 0x100000')
    mlall=mM
    a('L_poll:')
    a('buffer_load_dwordx2 %s, %s, %s, s76 offen sc1'%(vr(mlall,2),vr(vM),srd(sW)))
    a('buffer_load_dwordx4 %s, %s, %s, s74 offen sc1'%(vr(rg,4),vr(vA),srd(sW)))
    for k in range(1,8): a('buffer_load_dwordx4 %s, %s, %s, s%d offen sc1'%(vr(rg+4*k,4),vr(vA),srd(sW),76+k))
    a('s_waitcnt vmcnt(6)')
    a('v_max3_u32 %s, %s, %s, %s'%(vr(A0),vr(mlall),vr(mlall+1),vr(rg)))
    a('v_max3_u32 %s, %s, %s, %s'%(vr(A1),vr(rg+1),vr(rg+2),vr(rg+3)))
    def mx(dst,x,y): a('v_max3_u32 %s, %s, %s, %s'%(vr(dst),vr(dst),vr(x),vr(y)))
    mx(A0,rg+4,rg+5); mx(A1,rg+6,rg+7)
    for k in range(2,8):
        a('s_waitcnt vmcnt(%d)'%(7-k))
        mx(A0,rg+4*k,rg+4*k+1); mx(A1,rg+4*k+2,rg+4*k+3)
    a('v_max_u32 %s, %s, %s'%(vr(A0),vr(A0),vr(A1)))
    a('v_cmp_eq_u32 vcc, -1, %s'%vr(A0))
    a('s_sub_u32 s63, s63, 1')
    a('s_cbranch_scc1 L_have')
    a('s_cbranch_vccnz L_poll')
    a('L_have:')
    stamp(10)
    Mx=A0; Tm=A1
    a('v_max_f32_dpp %s, %s, %s row_ror:8%s'%(vr(Mx),vr(mlall),vr(mlall),DP))
    for k in (4,2,1): a('v_max_f32_dpp %s, %s, %s row_ror:%d%s'%(vr(Mx),vr(Mx),vr(Mx),k,DP))
    for sw_ in ('v_permlane16_swap_b32','v_permlane32_swap_b32'):
        a('v_mov_b32 %s, %s'%(vr(Tm),vr(Mx)))
        a('%s %s, %s'%(sw_,vr(Mx),vr(Tm)))
        a('v_max_f32 %s, %s, %s'%(vr(Mx),vr(Mx),vr(Tm)))
    Wg=LOG; Ls=UU
    a('v_sub_f32 %s, %s, %s'%(vr(Wg),vr(mlall),vr(Mx)))
    a('v_exp_f32 %s, %s'%(vr(Wg),vr(Wg)))
    a('s_nop 0')
    a('v_mul_f32 %s, %s, %s'%(vr(Ls),vr(Wg),vr(mlall+1)))
    tk=rg+32
    DL=' row_mask:0xf bank_mask:0x3'; DH=' row_mask:0xf bank_mask:0xc'
    lsops=['v_add_f32_dpp %s, %s, %s row_ror:%d%s'%(vr(Ls),vr(Ls),vr(Ls),k,DP) for k in (8,4,2,1)]
    for k in range(8):
        a('v_mov_b32_dpp %s, %s row_newbcast:%d%s'%(vr(tk+k),vr(Wg),k,DL))
        if k%2==1: a(lsops.pop(0))
    for k in range(8):
        a('v_mov_b32_dpp %s, %s row_newbcast:%d%s'%(vr(tk+k),vr(Wg),8+k,DH))
    for e in range(4): a('v_mul_f32 %s, %s, %s'%(vr(acc+e),vr(tk),vr(rg+e)))
    a('v_mov_b32 %s, %s'%(vr(Tm),vr(Ls)))
    for k in range(1,8):
        for e in range(4): a('v_fmac_f32 %s, %s, %s'%(vr(acc+e),vr(tk+k),vr(rg+4*k+e)))
        if k==1: a('v_permlane16_swap_b32 %s, %s'%(vr(Ls),vr(Tm)))
        if k==2:
            a('v_add_f32 %s, %s, %s'%(vr(Ls),vr(Ls),vr(Tm)))
            a('v_mov_b32 %s, %s'%(vr(Tm),vr(Ls)))
        if k==3: a('v_permlane32_swap_b32 %s, %s'%(vr(Ls),vr(Tm)))
        if k==4: a('v_add_f32 %s, %s, %s'%(vr(Ls),vr(Ls),vr(Tm)))
        if k==5: a('v_rcp_f32 %s, %s'%(vr(Ls),vr(Ls)))
    for e in range(4): a('v_add_f32_dpp %s, %s, %s row_ror:8%s'%(vr(acc+e),vr(acc+e),vr(acc+e),DP))
    for sw_ in ('v_permlane16_swap_b32','v_permlane32_swap_b32'):
        for e in range(4): a('v_mov_b32 %s, %s'%(vr(acc+4+e),vr(acc+e)))
        for e in range(4): a('%s %s, %s'%(sw_,vr(acc+e),vr(acc+4+e)))
        for e in range(4): a('v_add_f32 %s, %s, %s'%(vr(acc+e),vr(acc+e),vr(acc+4+e)))
    for e in range(4): a('v_mul_f32 %s, %s, %s'%(vr(acc+e),vr(acc+e),vr(Ls)))
    a('v_cvt_pk_bf16_f32 %s, %s, %s'%(vr(acc),vr(acc),vr(acc+1)))
    a('v_cvt_pk_bf16_f32 %s, %s, %s'%(vr(acc+1),vr(acc+2),vr(acc+3)))
    a('s_mov_b64 exec, 0xff')
    a('buffer_store_dwordx2 %s, %s, %s, s70 offen %s'%(vr(acc,2),vr(vDq),srd(sO),OPOL))
    a('L_fin:')
    if ST:
        a('s_mov_b64 exec, -1')
        a('s_waitcnt vmcnt(0)')
        stamp(11)
        a('s_getreg_b32 s70, hwreg(HW_REG_HW_ID)'); a('s_getreg_b32 s71, hwreg(HW_REG_XCC_ID, 0, 4)'); a('s_nop 1')
        a('v_writelane_b32 v%d, s70, 15'%vST); a('v_writelane_b32 v%d, s71, 9'%vST)
        a('s_lshl_b32 s70, s2, 3'); a('s_add_u32 s70, s70, s%d'%sw); a('s_lshl_b32 s70, s70, 6'); a('s_add_u32 s70, s70, 0x100000')
        a('v_and_b32 v1, 63, v0'); a('v_lshlrev_b32 v1, 2, v1')
        a('s_mov_b64 exec, 0xffff')
        a('buffer_store_dword v%d, v1, %s, s70 offen'%(vST,srd(sW)))
    a('L_end:')
    a('s_endpgm')
    lines,nn=fix_hazards(o)
    nvg=max((big+7)//8*8,136)
    lds=8*LDSW
    txt=HDR%(256,512,lds)+'\n'+'\n'.join(lines)+'\n'+FTR%(nvg,102,nvg)
    return txt, dict(nops=nn,vgpr=nvg,ninstr=len(lines))

if __name__=='__main__':
    kw={}
    for x in sys.argv[2:]:
        k,v=x.split('='); kw[k]=int(v) if v.lstrip('-').isdigit() else v
    t,info=gen(**kw)
    open(sys.argv[1],'w').write(t); print(info)
```

```python
from asmlib import *
import math, sys, struct

REC=2176
MLB=256*REC
WSZ=MLB+16*64*8
MAPS={
 'yx':['k','w0','w1','w2','x0','x1','x2','y0','y1','y2'],
 'xy':['k','w0','w1','w2','y0','y1','y2','x0','x1','x2'],
 'x4':['x0','x1','x2','k','w0','w1','w2','y0','y1','y2'],
 'x8':['k','x0','x1','x2','w0','w1','w2','y0','y1','y2'],
 'x16':['k','w0','x0','x1','x2','w1','w2','y0','y1','y2'],
 'x32':['k','w0','w1','x0','x1','x2','w2','y0','y1','y2'],
}
INVF=[0x3f800000,0x3f5dafd7,0x3f3ff911,0x3f263de0,0x3f0ff59a,0x3ef953cf,0x3ed7e89b,0x3ebaf81b,0x3ea1e89b,0x3e8c3504,0x3e72d423,0x3e5247ed,0x3e361887,0x3e1db040,0x3e088d77,0x3dec7fd6,
0x3dcccccd,0x3db15978,0x3d99940d,0x3d84fe4d,0x3d6655c2,0x3d47763f,0x3d2cba15,0x3d159348,0x3d0186e3,0x3ce054d2,0x3cc2434f,0x3ca8398b,0x3c91ad39,0x3c7c4d33,0x3c5a7bf2,0x3c3d3311,
0x3c23d70a,0x3c0de12d,0x3bf5b9b0,0x3bd4ca15,0x3bb8449c,0x3b9f91cc,0x3b8a2e77,0x3b6f520e,0x3b4f3e38,0x3b33770f,0x3b1b690d,0x3b06946f,0x3ae91528,0x3ac9d75c,0x3aaec98e,0x3a975c0e,
0x3a83126f,0x3a6301e2,0x3a44948c,0x3a2a3b44,0x3a136a16,0x39ff4fac,0x39dd1725,0x39bf74d7,0x39a5cb60,0x398f9272,0x3978a815,0x395753e4,0x393a7753,0x39217916,0x390bd472,0x38f22ce2]
def bitrev4(x): return ((x&1)<<3)|((x&2)<<1)|((x&4)>>1)|((x&8)>>3)

def gen(POL='nt', NS=16, CPOL='', SPOL='', tb='s0 s1 s2 x0 s3 x1 x2 w0 w1 w2 y0 y1 y2', RX=1, ST=0, TK=10, MW=7, R=16, bm='mid', xm='', HALF=1, OPOL='', KF=0, GEN=1, BT=8, PK=1):
    o=[]; a=o.append
    NT=16
    tb=tb.split()
    assert sorted(tb)==sorted(['s0','s1','s2','s3','w0','w1','w2','x0','x1','x2','y0','y1','y2']) and tb[0]=='s0' and tb[1]=='s1'
    p2,p3=tb.index('s2'),tb.index('s3')
    assert HALF==1 and p3>=2
    sK,sV,sC,sS,sQ,sKS,sKZ,sVS,sVZ,sQC,sQS,sO,sD,sW=4,8,12,16,20,24,28,32,36,40,44,48,52,56
    sw,sb,sg,soA,soB,sT,sT2,sel0,sel1,sBlk,sQo,sSo,sDo,sLb=88,89,90,91,92,93,94,95,96,97,98,99,100,101
    def srd(n): return 's[%d:%d]'%(n,n+3)
    nv=[1]
    def V(n=1,al=1):
        x=(nv[0]+al-1)//al*al; nv[0]=x+n; return x
    def vr(x,n=1): return 'v%d'%x if n==1 else 'v[%d:%d]'%(x,x+n-1)
    vKV=V(4); vC=V(4); vT0=V(); vT1=V(); vI=V(); vRr=V(); vT2=V()
    P1=V(4,2); P2=V(4,2)
    Cb=V(8,4); X=V(8,2)
    zk0=V();zk1=V();sk0=V();sk1=V();zv0=V();zv1=V();sv0=V();sv1=V()
    A0=V();A1=V();UU=V();LOG=V()
    ZB=V(2,2);AA=V(2,2);BB=V(2,2);AL=V()
    UA=V();UB=V();R1=[V(),V()];R2=[V(),V()];R3=[V(),V()];T3=V();T4=V()
    T34=V(4,4)
    acc=V(8,4)
    a0=V();a1=V();mM=V(2,2);c0=V();c1=V()
    vTK=V(); vST=V()
    vWA=V(); vWM=V(); vRM=V(); vSA=V()
    ring=V(8*NS,4)
    big=max(nv[0],ring+48)
    DP=' row_mask:0xf bank_mask:0xf'
    LDSW=8192 if not HALF else 4096
    def stamp(k):
        if not ST: return
        a('s_memrealtime s[0:1]'); a('s_waitcnt lgkmcnt(0)'); a('v_writelane_b32 v%d, s0, %d'%(vST,k))
    issued=[]
    def vm(text,tag): a(text); issued.append(tag)
    def wait_vm(tag):
        idx=max(i for i,t in enumerate(issued) if t==tag); n=len(issued)-1-idx
        assert n<=63
        a('s_waitcnt vmcnt(%d)'%n)
    a('s_load_dwordx16 s[60:75], s[0:1], 0')
    a('s_load_dwordx8 s[76:83], s[0:1], 64')
    a('s_load_dwordx4 s[84:87], s[0:1], 96')
    if ST: a('s_memrealtime s[0:1]')
    a('s_cmp_ge_u32 s2, 256')
    a('s_cbranch_scc1 L_end')
    a('v_lshrrev_b32 %s, 6, v0'%vr(vT0))
    a('v_and_b32 %s, 15, v0'%vr(vI))
    a('v_readfirstlane_b32 s%d, %s'%(sw,vr(vT0)))
    a('v_bfe_u32 %s, v0, 4, 2'%vr(vRr))
    if xm:
        cols=[int(v,16) for v in xm.split(':')]
        a('s_mov_b32 s4, 0')
        for bit,cm in enumerate(cols):
            a('s_bfe_i32 s5, s2, 0x%x'%((1<<16)|bit)); a('s_and_b32 s5, s5, 0x%x'%cm); a('s_xor_b32 s4, s4, s5')
        a('s_mov_b32 s3, s4')
    else: a('s_mov_b32 s3, s2')
    if bm=='mid':
        a('s_and_b32 s%d, s3, 7'%sT)
        a('s_bfe_u32 s%d, s3, 0x20003'%sb)
    else:
        a('s_and_b32 s%d, s3, 3'%sb)
        a('s_bfe_u32 s%d, s3, 0x30002'%sT)
    a('s_lshr_b32 s%d, s3, 5'%sT2)
    a('s_lshl_b32 s%d, s%d, 3'%(sg,sT2)); a('s_add_u32 s%d, s%d, s%d'%(sg,sg,sT))
    sizes={sK:64<<20,sV:64<<20,sC:2<<20,sS:2<<20,sQ:4096,sKS:512<<10,sKZ:512<<10,sVS:512<<10,sVZ:512<<10,sQC:256,sQS:256,sO:4096,sD:256,sW:(WSZ if not ST else (2<<20))}
    for n,sz in sizes.items():
        a('s_mov_b32 s%d, 0x%x'%(n+2,sz)); a('s_mov_b32 s%d, 0x20000'%(n+3))
    a('s_mov_b32 s%d, 0'%sBlk)
    pos=0
    while pos<13:
        src=tb[pos]
        if src[0]=='s': pos+=1; continue
        f=src[0]; b0=int(src[1]); n=1
        while pos+n<13 and tb[pos+n][0]==f and int(tb[pos+n][1])==b0+n: n+=1
        reg={'w':sw,'x':sT,'y':sT2}[f]
        a('s_bfe_u32 s%d, s%d, 0x%x'%(sQo,reg,(n<<16)|b0))
        a('s_lshl_b32 s%d, s%d, %d'%(sQo,sQo,pos))
        a('s_or_b32 s%d, s%d, s%d'%(sBlk,sBlk,sQo))
        pos+=n
    vQo,vQc,vSo,vD=X,X+1,X+2,X+3
    tA,tB=X+4,X+5
    a('v_lshlrev_b32 %s, 4, %s'%(vr(vT1),vr(vI)))
    a('v_lshl_add_u32 %s, %s, 22, %s'%(vr(vT1),vr(vRr),vr(vT1)))
    a('v_lshlrev_b32 %s, 3, %s'%(vr(vQc),vr(vI)))
    a('s_lshl_b32 s%d, s%d, 12'%(sLb,sw))
    vRho=X+6
    RHO={0:[0,0,0,0],1:[0,1,2,3],2:[0,2,1,3],3:[0,1,0,1],4:[0,2,0,2],5:[0,0,1,1],6:[0,0,2,2],7:[0,1,3,2],8:[0,3,1,2],9:[0,3,2,1],10:[0,2,3,1],11:[0,3,0,3],12:[0,0,3,3],13:[0,3,3,0],14:[0,1,1,0],15:[0,2,2,0]}[RX]
    if RX==1: a('v_mov_b32 %s, %s'%(vr(vRho),vr(vRr)))
    else:
        pk=sum(v<<(2*r) for r,v in enumerate(RHO))
        a('v_lshlrev_b32 %s, 1, %s'%(vr(vRho),vr(vRr)))
        a('v_lshrrev_b32 %s, %s, %d'%(vr(vRho),vr(vRho),pk) if False else 'v_mov_b32 %s, %d'%(vr(X+7),pk))
        a('v_lshrrev_b32 %s, %s, %s'%(vr(vRho),vr(vRho),vr(X+7)))
        a('v_and_b32 %s, 3, %s'%(vr(vRho),vr(vRho)))
    for hi in range(4):
        a('v_xor_b32 %s, %d, %s'%(vr(tA),hi,vr(vRho)))
        if GEN:
            a('v_lshlrev_b32 %s, 4, %s'%(vr(tB),vr(vI)))
            a('v_lshl_add_u32 %s, %s, 10, %s'%(vr(vC+hi),vr(tA),vr(tB)))
        else:
            a('v_lshl_add_u32 %s, %s, 9, %s'%(vr(vC+hi),vr(tA),vr(vQc)))
        a('v_add_u32 %s, s%d, %s'%(vr(vC+hi),sLb,vr(vC+hi)))
        a('v_and_b32 %s, 1, %s'%(vr(tB),vr(tA)))
        a('v_lshl_add_u32 %s, %s, %d, %s'%(vr(vKV+hi),vr(tB),9+p2,vr(vT1)))
        a('v_lshrrev_b32 %s, 1, %s'%(vr(tB),vr(tA)))
        a('v_lshl_add_u32 %s, %s, %d, %s'%(vr(vKV+hi),vr(tB),9+p3,vr(vKV+hi)))
    a('v_lshl_add_u32 %s, %s, 8, %s'%(vr(vQo),vr(vRr),vr(vQc)))
    a('v_bfrev_b32 %s, %s'%(vr(vD),vr(vI)))
    a('v_lshrrev_b32 %s, 28, %s'%(vr(vD),vr(vD)))
    a('v_lshlrev_b32 %s, 2, %s'%(vr(tA),vr(vRho)))
    a('v_xor_b32 %s, %s, %s'%(vr(vD),vr(vD),vr(tA)))
    a('v_and_b32 %s, 3, %s'%(vr(vSo),vr(vD)))
    a('v_lshlrev_b32 %s, 2, %s'%(vr(vSo),vr(vSo)))
    a('v_bfe_u32 %s, %s, 2, 1'%(vr(tA),vr(vD)))
    a('v_lshl_add_u32 %s, %s, %d, %s'%(vr(vSo),vr(tA),2+p2,vr(vSo)))
    a('v_lshrrev_b32 %s, 3, %s'%(vr(tA),vr(vD)))
    a('v_lshl_add_u32 %s, %s, %d, %s'%(vr(vSo),vr(tA),2+p3,vr(vSo)))
    a('v_lshl_add_u32 %s, %s, 15, %s'%(vr(vSo),vr(vRr),vr(vSo)))
    a('v_and_b32 %s, 63, v0'%vr(vT2))
    a('v_lshlrev_b32 %s, 4, %s'%(vr(vSA),vr(vT2)))
    a('v_bfe_u32 %s, %s, 3, 2'%(vr(tA),vr(vT2)))
    a('v_and_b32 %s, 7, %s'%(vr(vD),vr(vT2)))
    a('v_lshlrev_b32 %s, 4, %s'%(vr(vD),vr(vD)))
    a('v_lshl_add_u32 %s, %s, 8, %s'%(vr(vD),vr(tA),vr(vD)))
    a('v_lshrrev_b32 %s, 5, %s'%(vr(tA),vr(vT2)))
    a('v_lshl_add_u32 %s, %s, %d, %s'%(vr(vD),vr(tA),8+p2,vr(vD)))
    a('s_lshl_b32 s%d, s%d, 24'%(soA,sb))
    a('s_lshl_b32 s%d, s%d, 9'%(sT,sBlk))
    a('s_add_u32 s%d, s%d, s%d'%(soA,soA,sT))
    a('s_lshl_b32 s%d, s%d, 10'%(sQo,sb))
    a('s_lshl_b32 s%d, s%d, 17'%(sSo,sb))
    a('s_lshl_b32 s%d, s%d, 2'%(sT,sBlk))
    a('s_add_u32 s%d, s%d, s%d'%(sSo,sSo,sT))
    a('s_lshl_b32 s%d, s%d, 8'%(sDo,sBlk))
    a('s_mov_b32 s%d, 0x05040100'%sel0)
    a('s_mov_b32 s%d, 0x07060302'%sel1)
    if not GEN: a('s_mov_b32 m0, s%d'%sLb)
    if not GEN: a('s_add_u32 s%d, s%d, %d'%(sBlk,sDo,(256<<p3)-1024))
    if ST: a('v_mov_b32 v%d, 0'%vST)
    a('s_waitcnt lgkmcnt(0)')
    if ST: a('v_writelane_b32 v%d, s0, 0'%vST)
    stamp(1)
    mv={sQ:60,sK:62,sKS:64,sKZ:66,sV:68,sVS:70,sVZ:72,sQC:74,sQS:76,sC:78,sS:80,sO:82,sD:84,sW:86}
    NL=2*NT
    NB=NT//BT
    seq=[]
    for be in range(NB):
        seq+=[('K',be*BT+u) for u in range(BT)]+[('V',be*BT+u) for u in range(BT)]
    def issue(j):
        kind,s=seq[j]
        slot=ring+8*(j%NS); base=sK if kind=='K' else sV
        off=(s%4)*512; tag='L%d'%j
        vm('buffer_load_dwordx4 %s, %s, %s, s%d offen offset:%d %s'%(vr(slot,4),vr(vKV+(s>>2)),srd(base),soA,off,POL),tag)
        vm('buffer_load_dwordx4 %s, %s, %s, s%d offen offset:%d %s'%(vr(slot+4,4),vr(vKV+(s>>2)),srd(base),soA,off+256,POL),tag)
    def mov(n): a('s_mov_b64 s[%d:%d], s[%d:%d]'%(n,n+1,mv[n],mv[n]+1))
    mov(sK); mov(sV)
    for j in range(KF): issue(j)
    for n in ((sQ,sQC,sQS,sKS,sKZ,sVS,sVZ) if GEN else (sQ,sQC,sQS,sKS,sKZ,sVS,sVZ,sC,sS)): mov(n)
    vm('buffer_load_dwordx2 %s, %s, %s, s%d offen'%(vr(P1,2),vr(vQo),srd(sQ),sQo),'q')
    vm('buffer_load_dwordx2 %s, %s, %s, s%d offen offset:128'%(vr(P1+2,2),vr(vQo),srd(sQ),sQo),'q')
    vm('buffer_load_dwordx2 %s, %s, %s, 0 offen'%(vr(Cb,2),vr(vQc),srd(sQC)),'q')
    vm('buffer_load_dwordx2 %s, %s, %s, 0 offen offset:128'%(vr(Cb+2,2),vr(vQc),srd(sQC)),'q')
    vm('buffer_load_dwordx2 %s, %s, %s, 0 offen'%(vr(Cb+4,2),vr(vQc),srd(sQS)),'q')
    vm('buffer_load_dwordx2 %s, %s, %s, 0 offen offset:128'%(vr(Cb+6,2),vr(vQc),srd(sQS)),'q')
    vm('buffer_load_dword %s, %s, %s, s%d offen %s'%(vr(sk1),vr(vSo),srd(sKS),sSo,SPOL),'sc')
    vm('buffer_load_dword %s, %s, %s, s%d offen %s'%(vr(zk1),vr(vSo),srd(sKZ),sSo,SPOL),'sc')
    vm('buffer_load_dword %s, %s, %s, s%d offen %s'%(vr(sv1),vr(vSo),srd(sVS),sSo,SPOL),'sc')
    vm('buffer_load_dword %s, %s, %s, s%d offen %s'%(vr(zv1),vr(vSo),srd(sVZ),sSo,SPOL),'sc')
    if not GEN:
        for t,tbl in enumerate((sC,sS)):
            if t:
                a('s_add_u32 s%d, s%d, %d'%(sT,sLb,LDSW//2)); a('s_mov_b32 m0, s%d'%sT)
            for k in range(2):
                vm('buffer_load_dwordx4 %s, %s, s%d offen offset:%d %s lds'%(vr(vD),srd(tbl),sDo if k<1 else sBlk,k*1024,CPOL),'dma')
    for j in range(KF,min(NS,NL)): issue(j)
    for n in (sW,sO,sD): mov(n)
    a('s_lshl_b32 s64, s%d, 6'%sb); a('s_add_u32 s64, s64, s%d'%sg); a('s_mul_i32 s64, s64, %d'%REC)
    a('s_lshl_b32 s65, s%d, 11'%sb); a('s_lshl_b32 s66, s%d, 3'%sg); a('s_add_u32 s65, s65, s66'); a('s_add_u32 s65, s65, %d'%MLB)
    a('s_lshl_b32 s67, s%d, 6'%sb)
    a('s_cmp_lg_u32 s%d, %d'%(sw,MW))
    a('s_cbranch_scc1 L_nomark')
    for k in range(4): a('v_mov_b32 %s, -1'%vr(acc+k))
    a('buffer_store_dwordx4 %s, %s, %s, s64 offen sc1'%(vr(acc,4),vr(vSA),srd(sW)))
    a('buffer_store_dwordx4 %s, %s, %s, s64 offen offset:1024 sc1'%(vr(acc,4),vr(vSA),srd(sW)))
    a('v_lshlrev_b32 %s, 5, %s'%(vr(vT2),vr(vSA)))
    a('s_mov_b64 exec, 15')
    a('buffer_store_dwordx2 %s, %s, %s, s65 offen sc1'%(vr(acc,2),vr(vT2),srd(sW)))
    a('s_mov_b64 exec, -1')
    a('s_nop 1')
    a('L_nomark:')
    mark_pos=len(issued)
    a('v_lshlrev_b32 %s, 4, %s'%(vr(vWA),vr(vI)))
    a('v_lshl_add_u32 %s, %s, 9, %s'%(vr(vWA),vr(vRr),vr(vWA)))
    a('v_add_u32 %s, s%d, %s'%(vr(vWA),sLb,vr(vWA)))
    a('v_lshlrev_b32 %s, 3, %s'%(vr(vWM),vr(vRr)))
    a('v_add_u32 %s, 2048, %s'%(vr(vWM),vr(vWM)))
    a('v_add_u32 %s, s%d, %s'%(vr(vWM),sLb,vr(vWM)))
    a('v_and_b32 %s, 63, v0'%vr(vT2))
    a('v_lshlrev_b32 %s, 2, %s'%(vr(vT2),vr(vT2)))
    a('s_lshl_b32 s68, s%d, 8'%sw)
    a('v_add_u32 %s, s68, %s'%(vr(vSA),vr(vT2)))
    a('s_lshr_b32 s69, s%d, 1'%sw)
    a('s_lshl_b32 s70, s69, 3'); a('s_add_u32 s70, s70, 2048')
    a('v_mov_b32 %s, s70'%vr(vRM))
    a('s_lshl_b32 s70, s69, 9'); a('s_add_u32 s65, s65, s70')
    a('v_mov_b32 %s, 1'%vr(vTK))
    if GEN:
        INV=[acc+0,acc+1,acc+2,acc+3]
        a('s_mov_b32 s60, 0x00010001'); a('s_mov_b32 s61, 0x00010001')
        for i in range(16):
            a('s_lshl_b64 exec, s[60:61], %d'%i)
            for j in range(4): a('v_mov_b32 %s, 0x%08x'%(vr(INV[j]),INVF[4*i+j]))
        a('s_mov_b64 exec, -1')
        a('s_mov_b32 s62, 0x3e22f983'); a('s_mov_b32 s63, 0x31dc9c88')
        tf=acc+4; ang=[A0,A1,UU,LOG]; nn_=[UA,UB,R1[0],R1[1]]; fr=[R2[0],R2[1],R3[0],R3[1]]
        a('v_lshlrev_b32 %s, 4, %s'%(vr(acc+5),vr(vI)))
        a('v_lshl_add_u32 %s, %s, 8, %s'%(vr(acc+5),vr(vRr),vr(acc+5)))
        a('v_add_u32 %s, s%d, %s'%(vr(acc+5),sLb,vr(acc+5)))
        for k in range(4):
            a('s_add_u32 s%d, s%d, %d'%(sT,sBlk,((k&1)<<p2)|((k>>1)<<p3)))
            a('v_add_u32 %s, s%d, %s'%(vr(tf),sT,vr(vRr)))
            a('v_cvt_f32_u32 %s, %s'%(vr(tf),vr(tf)))
            for j in range(4): a('v_mul_f32 %s, %s, %s'%(vr(ang[j]),vr(tf),vr(INV[j])))
            for j in range(4): a('v_mul_f32 %s, s62, %s'%(vr(nn_[j]),vr(ang[j])))
            for j in range(4): a('v_rndne_f32 %s, %s'%(vr(nn_[j]),vr(nn_[j])))
            for j in range(4): a('v_fma_f32 %s, %s, s62, -%s'%(vr(fr[j]),vr(ang[j]),vr(nn_[j])))
            for j in range(4): a('v_fma_f32 %s, %s, s63, %s'%(vr(fr[j]),vr(ang[j]),vr(fr[j])))
            for j in range(4):
                a('v_cos_f32 %s, %s'%(vr(ang[j]),vr(fr[j])))
                a('v_sin_f32 %s, %s'%(vr(nn_[j]),vr(fr[j])))
            G4=ring+8*(NS-1) if False else T34
            for j in range(4): a('v_cvt_pk_bf16_f32 %s, %s, %s'%(vr(G4+j),vr(ang[j]),vr(nn_[j])))
            a('ds_write_b128 %s, %s offset:%d'%(vr(acc+5),vr(G4,4),k*1024))
    wait_vm('q')
    stamp(2)
    t=[acc+k for k in range(8)]+[A0,A1,UU,LOG,a0,a1,c0,c1]
    ql,qh,cl,ch,sl,sh,t1,t2,t3,t4=t[0:10]
    res=[X+4,X+5,X+6,X+7, mM,mM+1, t[10],t[11]]
    def unpack(dst,src,j):
        r=src+(j>>1)
        if j&1: a('v_and_b32 %s, 0xffff0000, %s'%(vr(dst),vr(r)))
        else:   a('v_lshlrev_b32 %s, 16, %s'%(vr(dst),vr(r)))
    for j in range(4):
        unpack(ql,P1,j); unpack(qh,P1+2,j); unpack(cl,Cb,j); unpack(ch,Cb+2,j); unpack(sl,Cb+4,j); unpack(sh,Cb+6,j)
        a('v_mul_f32 %s, %s, %s'%(vr(t1),vr(ql),vr(cl)))
        a('v_mul_f32 %s, %s, %s'%(vr(t2),vr(qh),vr(sl)))
        a('v_mul_f32 %s, %s, %s'%(vr(t3),vr(qh),vr(ch)))
        a('v_mul_f32 %s, %s, %s'%(vr(t4),vr(ql),vr(sh)))
        a('v_cvt_pk_bf16_f32 %s, %s, %s'%(vr(t1),vr(t1),vr(t2)))
        a('v_cvt_pk_bf16_f32 %s, %s, %s'%(vr(t3),vr(t3),vr(t4)))
        a('v_and_b32 %s, 0xffff0000, %s'%(vr(t2),vr(t1)))
        a('v_lshlrev_b32 %s, 16, %s'%(vr(t1),vr(t1)))
        a('v_and_b32 %s, 0xffff0000, %s'%(vr(t4),vr(t3)))
        a('v_lshlrev_b32 %s, 16, %s'%(vr(t3),vr(t3)))
        a('v_sub_f32 %s, %s, %s'%(vr(res[j]),vr(t1),vr(t2)))
        a('v_add_f32 %s, %s, %s'%(vr(res[4+j]),vr(t3),vr(t4)))
    for j in range(4):
        a('v_cvt_pk_bf16_f32 %s, %s, %s'%(vr(P1+j),vr(res[j]),vr(res[4+j])))
        a('v_cvt_pk_bf16_f32 %s, %s, -%s'%(vr(P2+j),vr(res[4+j]),vr(res[j])))
    wait_vm('sc')
    for hi,lo in ((sk1,sk0),(zk1,zk0),(sv1,sv0),(zv1,zv0)):
        a('v_lshlrev_b32 %s, 16, %s'%(vr(lo),vr(hi)))
        a('v_and_b32 %s, 0xffff0000, %s'%(vr(hi),vr(hi)))
    a('s_mov_b32 s60, 0xcccccccc'); a('s_mov_b32 s61, 0xcccccccc')
    a('s_mov_b32 s62, 0xaaaaaaaa'); a('s_mov_b32 s63, 0xaaaaaaaa')
    if not GEN: wait_vm('dma')
    else: a('s_waitcnt lgkmcnt(0)')
    def csread(s):
        if GEN:
            a('ds_read_b128 %s, %s offset:%d'%(vr(Cb,4),vr(vC+(s>>2)),(s&3)*256))
        elif HALF:
            a('ds_read_b64 %s, %s offset:%d'%(vr(Cb,2),vr(vC+(s>>2)),(s&3)*128))
            a('ds_read_b64 %s, %s offset:%d'%(vr(Cb+2,2),vr(vC+(s>>2)),2048+(s&3)*128))
        else:
            a('ds_read_b64 %s, %s offset:%d'%(vr(Cb,2),vr(vC),s*256))
            a('ds_read_b64 %s, %s offset:%d'%(vr(Cb+2,2),vr(vC),s*256+128))
            a('ds_read_b64 %s, %s offset:%d'%(vr(Cb+4,2),vr(vC),4096+s*256))
            a('ds_read_b64 %s, %s offset:%d'%(vr(Cb+6,2),vr(vC),4096+s*256+128))
    csread(0)
    def ticket():
        a('s_cmp_lg_u32 s%d, %d'%(sw,MW))
        a('s_cbranch_scc1 L_notk')
        a('s_waitcnt vmcnt(%d)'%min(63,len(issued)-mark_pos))
        a('s_mov_b64 exec, 1')
        a('buffer_atomic_add %s, off, %s, s67 sc0 sc1'%(vr(vTK),srd(sD)))
        a('s_mov_b64 exec, -1')
        a('L_notk:')
    def dpp(op,d,x,ctl,bank=0xf): return '%s %s, %s, %s %s row_mask:0xf bank_mask:0x%x'%(op,vr(d),vr(x),vr(x),ctl,bank)
    def merges(u):
        ops=[]
        if u&1==1:
            r1=R1[(u>>1)&1]
            ops.append(dpp('v_add_f32_dpp',r1,UA,'row_ror:8',0x3))
            ops.append(dpp('v_add_f32_dpp',r1,UB,'row_ror:8',0xc))
            if u&3==3:
                r2=R2[(u>>2)&1]
                ops.append(dpp('v_add_f32_dpp',r2,R1[0],'row_half_mirror',0x5))
                ops.append(dpp('v_add_f32_dpp',r2,R1[1],'row_half_mirror',0xa))
                if u&7==7:
                    r3=R3[(u>>3)&1]
                    ops.append(dpp('v_add_f32_dpp',T3,R2[0],'quad_perm:[2,3,0,1]'))
                    ops.append(dpp('v_add_f32_dpp',T4,R2[1],'quad_perm:[2,3,0,1]'))
                    ops.append('v_cndmask_b32 %s, %s, %s, s[60:61]'%(vr(r3),vr(T3),vr(T4)))
                    if u==15:
                        ops.append(dpp('v_add_f32_dpp',T3,R3[0],'quad_perm:[1,0,3,2]'))
                        ops.append(dpp('v_add_f32_dpp',T4,R3[1],'quad_perm:[1,0,3,2]'))
                        ops.append('v_cndmask_b32 %s, %s, %s, s[62:63]'%(vr(LOG),vr(T3),vr(T4)))
        if u==BT-1:
            if BT==8: ops.append(dpp('v_add_f32_dpp',LOG,R3[0],'quad_perm:[1,0,3,2]'))
            if BT==4:
                ops.append(dpp('v_add_f32_dpp',T3,R2[0],'quad_perm:[2,3,0,1]'))
                ops.append(dpp('v_add_f32_dpp',LOG,T3,'quad_perm:[1,0,3,2]'))
        return ops
    c=math.log2(math.e)/math.sqrt(128.0)
    cbits=struct.unpack('<I',struct.pack('<f',c))[0]
    m_,l_=mM,mM+1
    pend=[]
    DPb=lambda ls: 'row_newbcast:%d%s'%(ls,DP)
    def kstep(j,s):
        nonlocal pend
        u=s%BT
        slot=ring+8*(j%NS); ls=bitrev4(s)
        a('s_waitcnt lgkmcnt(0)')
        dots=[]
        if GEN: src=Cb
        else:
            for q in range(4):
                a('v_perm_b32 %s, %s, %s, s%d'%(vr(X+q),vr(Cb+2+(q>>1)),vr(Cb+(q>>1)),sel1 if q&1 else sel0))
            if s+1<NT: csread(s+1)
            src=X
        for q in range(4): dots.append('v_dot2_f32_bf16 %s, %s, %s, 0'%(vr(X+4+q),vr(src+q),vr(P2+q)))
        for q in range(4): dots.append('v_dot2_f32_bf16 %s, %s, %s, 0'%(vr(X+q),vr(src+q),vr(P1+q)))
        for k,p in enumerate(dots):
            a(p)
            if k%2==1 and pend: a(pend.pop(0))
        if GEN and s+1<NT: csread(s+1)
        if PK:
            a('v_mov_b32_dpp %s, %s %s'%(vr(ZB),vr(zk0),DPb(ls)))
            a('v_mov_b32_dpp %s, %s %s'%(vr(ZB+1),vr(zk1),DPb(ls)))
        wait_vm('L%d'%j)
        if s==0: stamp(3)
        if s==8: stamp(12)
        if j==TK: ticket()
        for q in range(8):
            a('v_cvt_f32_i32 %s, %s'%(vr(slot+q),vr(slot+q)))
            if q%2==1 and pend: a(pend.pop(0))
        while pend: a(pend.pop(0))
        U=UB if u&1 else UA
        if PK:
            for q in range(4):
                sel='op_sel:[0,0] op_sel_hi:[1,0]' if q<2 else 'op_sel:[0,1] op_sel_hi:[1,1]'
                a('v_pk_add_f32 %s, %s, %s %s neg_lo:[0,1] neg_hi:[0,1]'%(vr(slot+2*q,2),vr(slot+2*q,2),vr(ZB,2),sel))
            a('v_pk_mul_f32 %s, %s, %s'%(vr(AA,2),vr(slot,2),vr(X,2)))
            a('v_pk_mul_f32 %s, %s, %s'%(vr(BB,2),vr(slot+4,2),vr(X+4,2)))
            a('v_pk_fma_f32 %s, %s, %s, %s'%(vr(AA,2),vr(slot+2,2),vr(X+2,2),vr(AA,2)))
            a('v_pk_fma_f32 %s, %s, %s, %s'%(vr(BB,2),vr(slot+6,2),vr(X+6,2),vr(BB,2)))
            a('v_add_f32 %s, %s, %s'%(vr(A0),vr(AA),vr(AA+1)))
            a('v_add_f32 %s, %s, %s'%(vr(A1),vr(BB),vr(BB+1)))
            if j+NS<NL: issue(j+NS)
            a('v_mul_f32_dpp %s, %s, %s %s'%(vr(U),vr(sk0),vr(A0),DPb(ls)))
            a('v_mul_f32_dpp %s, %s, %s %s'%(vr(A0),vr(sk1),vr(A1),DPb(ls)))
            a('v_add_f32 %s, %s, %s'%(vr(U),vr(U),vr(A0)))
        else:
            for q in range(8):
                a('v_subrev_f32_dpp %s, %s, %s %s'%(vr(slot+q),vr(zk0 if q<4 else zk1),vr(slot+q),DPb(ls)))
            a('v_mul_f32 %s, %s, %s'%(vr(A0),vr(slot),vr(X)))
            a('v_mul_f32 %s, %s, %s'%(vr(A1),vr(slot+4),vr(X+4)))
            a('v_fmac_f32 %s, %s, %s'%(vr(A0),vr(slot+1),vr(X+1)))
            a('v_fmac_f32 %s, %s, %s'%(vr(A1),vr(slot+5),vr(X+5)))
            a('v_fmac_f32 %s, %s, %s'%(vr(A0),vr(slot+2),vr(X+2)))
            a('v_fmac_f32 %s, %s, %s'%(vr(A0),vr(slot+3),vr(X+3)))
            a('v_fmac_f32 %s, %s, %s'%(vr(A1),vr(slot+6),vr(X+6)))
            a('v_fmac_f32 %s, %s, %s'%(vr(A1),vr(slot+7),vr(X+7)))
            a('v_mul_f32_dpp %s, %s, %s %s'%(vr(U),vr(sk0),vr(A0),DPb(ls)))
            if j+NS<NL: issue(j+NS)
            a('v_fmac_f32_dpp %s, %s, %s %s'%(vr(U),vr(sk1),vr(A1),DPb(ls)))
        pend=merges(u)
    def softmax(be):
        a('v_mul_f32 %s, 0x%08x, %s'%(vr(LOG),cbits,vr(LOG)))
        lev={16:(8,4,2,1),8:(8,4,2),4:(8,4)}[BT]
        mb=m_ if be==0 else T3
        a('v_max_f32_dpp %s, %s, %s row_ror:%d%s'%(vr(mb),vr(LOG),vr(LOG),lev[0],DP))
        for k in lev[1:]: a('v_max_f32_dpp %s, %s, %s row_ror:%d%s'%(vr(mb),vr(mb),vr(mb),k,DP))
        if be>0:
            a('v_max_f32 %s, %s, %s'%(vr(mb),vr(mb),vr(m_)))
            a('v_sub_f32 %s, %s, %s'%(vr(AL),vr(m_),vr(mb)))
            a('v_mov_b32 %s, %s'%(vr(m_),vr(mb)))
            a('v_exp_f32 %s, %s'%(vr(AL),vr(AL)))
        pp=T4
        a('v_sub_f32 %s, %s, %s'%(vr(pp),vr(LOG),vr(m_)))
        a('v_exp_f32 %s, %s'%(vr(pp),vr(pp)))
        if NB>1:
            pat=be if BT==8 else (((be&1)<<1)|(be>>1))
            mk={8:0x55555555,4:0x11111111}[BT]<<pat
            a('s_mov_b32 s70, 0x%x'%mk); a('s_mov_b32 s71, 0x%x'%mk)
            a('v_cndmask_b32 %s, 0, %s, s[70:71]'%(vr(pp),vr(pp)))
        else: a('s_nop 0')
        a('v_mul_f32 %s, %s, %s'%(vr(a0),vr(pp),vr(sv0)))
        a('v_mul_f32 %s, %s, %s'%(vr(a1),vr(pp),vr(sv1)))
        a('v_mul_f32 %s, %s, %s'%(vr(c0),vr(a0),vr(zv0)))
        a('v_mul_f32 %s, %s, %s'%(vr(c1),vr(a1),vr(zv1)))
        for k in (8,4,2,1):
            for x in (pp,c0,c1): a('v_add_f32_dpp %s, %s, %s row_ror:%d%s'%(vr(x),vr(x),vr(x),k,DP))
        if be==0:
            a('v_mov_b32 %s, %s'%(vr(l_),vr(pp)))
            for k in range(8): a('v_sub_f32 %s, 0, %s'%(vr(acc+k),vr(c0 if k<4 else c1)))
        else:
            a('v_fma_f32 %s, %s, %s, %s'%(vr(l_),vr(l_),vr(AL),vr(pp)))
            for k in range(8): a('v_fma_f32 %s, %s, %s, -%s'%(vr(acc+k),vr(acc+k),vr(AL),vr(c0 if k<4 else c1)))
        if be==NB-1: a('ds_write_b64 %s, %s'%(vr(vWM),vr(mM,2)))
    def vstep(j,s):
        slot=ring+8*(j%NS); ls=bitrev4(s)
        if PK:
            a('v_mov_b32_dpp %s, %s %s'%(vr(ZB),vr(a0),DPb(ls)))
            a('v_mov_b32_dpp %s, %s %s'%(vr(ZB+1),vr(a1),DPb(ls)))
        wait_vm('L%d'%j)
        if s==0: stamp(13)
        if s==8: stamp(14)
        if j==TK: ticket()
        for k in range(8): a('v_cvt_f32_i32 %s, %s'%(vr(slot+k),vr(slot+k)))
        if PK:
            for q in range(4):
                sel='op_sel:[0,0,0] op_sel_hi:[1,0,1]' if q<2 else 'op_sel:[0,1,0] op_sel_hi:[1,1,1]'
                a('v_pk_fma_f32 %s, %s, %s, %s %s'%(vr(acc+2*q,2),vr(slot+2*q,2),vr(ZB,2),vr(acc+2*q,2),sel))
        else:
            for k in range(8):
                a('v_fmac_f32_dpp %s, %s, %s %s'%(vr(acc+k),vr(a0 if k<4 else a1),vr(slot+k),DPb(ls)))
        if j+NS<NL: issue(j+NS)
    for j,(kind,s) in enumerate(seq):
        if kind=='K':
            kstep(j,s)
            if s%BT==BT-1:
                while pend: a(pend.pop(0))
                if s==NT-1: stamp(4)
                softmax(s//BT)
        else: vstep(j,s)
    stamp(5)
    a('ds_write_b128 %s, %s'%(vr(vWA),vr(acc,4)))
    a('ds_write_b128 %s, %s offset:256'%(vr(vWA),vr(acc+4,4)))
    a('s_waitcnt lgkmcnt(0)')
    a('s_barrier')
    stamp(6)
    rg=ring; ml=rg+16
    for w in range(8): a('ds_read_b64 %s, %s offset:%d'%(vr(ml+2*w,2),vr(vRM),w*LDSW))
    for w in range(8): a('ds_read_b32 %s, %s offset:%d'%(vr(rg+w),vr(vSA),w*LDSW))
    a('s_waitcnt lgkmcnt(8)')
    a('v_max3_f32 %s, %s, %s, %s'%(vr(m_),vr(ml),vr(ml+2),vr(ml+4)))
    a('v_max3_f32 %s, %s, %s, %s'%(vr(A0),vr(ml+6),vr(ml+8),vr(ml+10)))
    a('v_max3_f32 %s, %s, %s, %s'%(vr(m_),vr(m_),vr(ml+12),vr(ml+14)))
    a('v_max_f32 %s, %s, %s'%(vr(m_),vr(m_),vr(A0)))
    for w in range(8): a('v_sub_f32 %s, %s, %s'%(vr(ml+2*w),vr(ml+2*w),vr(m_)))
    for w in range(8): a('v_exp_f32 %s, %s'%(vr(ml+2*w),vr(ml+2*w)))
    a('s_waitcnt lgkmcnt(0)')
    a('v_mul_f32 %s, %s, %s'%(vr(A0),vr(ml),vr(rg)))
    a('v_mul_f32 %s, %s, %s'%(vr(A1),vr(ml+2),vr(rg+1)))
    a('v_mul_f32 %s, %s, %s'%(vr(l_),vr(ml),vr(ml+1)))
    for w in range(2,8,2):
        a('v_fmac_f32 %s, %s, %s'%(vr(A0),vr(ml+2*w),vr(rg+w)))
        a('v_fmac_f32 %s, %s, %s'%(vr(A1),vr(ml+2*w+2),vr(rg+w+1)))
    a('v_add_f32 %s, %s, %s'%(vr(A0),vr(A0),vr(A1)))
    a('v_min_u32 %s, -2, %s'%(vr(A0),vr(A0)))
    a('buffer_store_dword %s, %s, %s, s64 offen sc1'%(vr(A0),vr(vSA),srd(sW)))
    a('s_bitcmp1_b32 s%d, 0'%sw)
    a('s_cbranch_scc1 L_noml')
    for w in range(1,8): a('v_fmac_f32 %s, %s, %s'%(vr(l_),vr(ml+2*w),vr(ml+2*w+1)))
    a('v_min_u32 %s, -2, %s'%(vr(m_),vr(m_)))
    a('v_min_u32 %s, -2, %s'%(vr(l_),vr(l_)))
    a('s_mov_b64 exec, 1')
    a('buffer_store_dwordx2 %s, off, %s, s65 sc1'%(vr(mM,2),srd(sW)))
    a('s_mov_b64 exec, -1')
    a('L_noml:')
    stamp(7)
    a('s_cmp_lg_u32 s%d, %d'%(sw,MW))
    a('s_cbranch_scc1 L_fin')
    a('v_readfirstlane_b32 s62, %s'%vr(vTK))
    a('s_nop 4')
    a('s_cmp_lt_u32 s62, %d'%(64-R))
    a('s_cbranch_scc1 L_fin')
    assert R==16
    a('s_sub_u32 s62, s62, 48')
    a('s_lshr_b32 s72, s62, 2')
    a('s_and_b32 s73, s62, 3')
    a('s_mul_i32 s74, s%d, %d'%(sb,64*REC))
    a('s_lshl_b32 s75, s72, 9'); a('s_add_u32 s74, s74, s75')
    a('s_lshl_b32 s75, s73, 7'); a('s_add_u32 s74, s74, s75')
    a('s_lshl_b32 s76, s%d, 11'%sb); a('s_lshl_b32 s75, s72, 9'); a('s_add_u32 s76, s76, s75'); a('s_add_u32 s76, s76, %d'%MLB)
    for k in range(1,8): a('s_add_u32 s%d, s74, %d'%(76+k,k*REC))
    vL,vJ,vDq,vA,vM=vT0,vT1,vT2,vC,vKV
    a('v_and_b32 %s, 63, v0'%vr(vL))
    a('v_lshrrev_b32 %s, 3, %s'%(vr(vJ),vr(vL)))
    a('v_and_b32 %s, 7, %s'%(vr(vDq),vr(vL)))
    a('v_lshlrev_b32 %s, 3, %s'%(vr(vM),vr(vL)))
    a('v_mul_u32_u24 %s, %d, %s'%(vr(vA),8*REC,vr(vJ)))
    a('v_lshl_add_u32 %s, %s, 4, %s'%(vr(vA),vr(vDq),vr(vA)))
    a('s_lshl_b32 s70, s%d, 2'%sb); a('s_add_u32 s70, s70, s72'); a('s_lshl_b32 s70, s70, 8')
    a('s_lshl_b32 s71, s73, 6'); a('s_add_u32 s70, s70, s71')
    a('v_lshlrev_b32 %s, 3, %s'%(vr(vDq),vr(vDq)))
    a('s_mov_b32 s63, 0x200000')
    a('s_mov_b64 exec, 1')
    a('L_spin:')
    a('buffer_load_dword %s, off, %s, s67 sc1'%(vr(A1),srd(sD)))
    a('s_waitcnt vmcnt(0)')
    a('v_readfirstlane_b32 s84, %s'%vr(A1))
    a('s_sub_u32 s63, s63, 1')
    a('s_cbranch_scc1 L_go')
    a('s_nop 2')
    a('s_cmp_lt_u32 s84, 64')
    a('s_cbranch_scc1 L_spin')
    a('L_go:')
    a('s_mov_b64 exec, -1')
    stamp(8)
    a('s_mov_b32 s63, 0x100000')
    mlall=mM
    a('L_poll:')
    a('buffer_load_dwordx2 %s, %s, %s, s76 offen sc1'%(vr(mlall,2),vr(vM),srd(sW)))
    a('buffer_load_dwordx4 %s, %s, %s, s74 offen sc1'%(vr(rg,4),vr(vA),srd(sW)))
    for k in range(1,8): a('buffer_load_dwordx4 %s, %s, %s, s%d offen sc1'%(vr(rg+4*k,4),vr(vA),srd(sW),76+k))
    a('s_waitcnt vmcnt(6)')
    a('v_max3_u32 %s, %s, %s, %s'%(vr(A0),vr(mlall),vr(mlall+1),vr(rg)))
    a('v_max3_u32 %s, %s, %s, %s'%(vr(A1),vr(rg+1),vr(rg+2),vr(rg+3)))
    def mx(dst,x,y): a('v_max3_u32 %s, %s, %s, %s'%(vr(dst),vr(dst),vr(x),vr(y)))
    mx(A0,rg+4,rg+5); mx(A1,rg+6,rg+7)
    for k in range(2,8):
        a('s_waitcnt vmcnt(%d)'%(7-k))
        mx(A0,rg+4*k,rg+4*k+1); mx(A1,rg+4*k+2,rg+4*k+3)
    a('v_max_u32 %s, %s, %s'%(vr(A0),vr(A0),vr(A1)))
    a('v_cmp_eq_u32 vcc, -1, %s'%vr(A0))
    a('s_sub_u32 s63, s63, 1')
    a('s_cbranch_scc1 L_have')
    a('s_cbranch_vccnz L_poll')
    a('L_have:')
    stamp(10)
    Mx=A0; Tm=A1
    a('v_max_f32_dpp %s, %s, %s row_ror:8%s'%(vr(Mx),vr(mlall),vr(mlall),DP))
    for k in (4,2,1): a('v_max_f32_dpp %s, %s, %s row_ror:%d%s'%(vr(Mx),vr(Mx),vr(Mx),k,DP))
    for sw_ in ('v_permlane16_swap_b32','v_permlane32_swap_b32'):
        a('v_mov_b32 %s, %s'%(vr(Tm),vr(Mx)))
        a('%s %s, %s'%(sw_,vr(Mx),vr(Tm)))
        a('v_max_f32 %s, %s, %s'%(vr(Mx),vr(Mx),vr(Tm)))
    Wg=LOG; Ls=UU
    a('v_sub_f32 %s, %s, %s'%(vr(Wg),vr(mlall),vr(Mx)))
    a('v_exp_f32 %s, %s'%(vr(Wg),vr(Wg)))
    a('s_nop 0')
    a('v_mul_f32 %s, %s, %s'%(vr(Ls),vr(Wg),vr(mlall+1)))
    tk=rg+32
    DL=' row_mask:0xf bank_mask:0x3'; DH=' row_mask:0xf bank_mask:0xc'
    lsops=['v_add_f32_dpp %s, %s, %s row_ror:%d%s'%(vr(Ls),vr(Ls),vr(Ls),k,DP) for k in (8,4,2,1)]
    for k in range(8):
        a('v_mov_b32_dpp %s, %s row_newbcast:%d%s'%(vr(tk+k),vr(Wg),k,DL))
        if k%2==1: a(lsops.pop(0))
    for k in range(8):
        a('v_mov_b32_dpp %s, %s row_newbcast:%d%s'%(vr(tk+k),vr(Wg),8+k,DH))
    for e in range(4): a('v_mul_f32 %s, %s, %s'%(vr(acc+e),vr(tk),vr(rg+e)))
    a('v_mov_b32 %s, %s'%(vr(Tm),vr(Ls)))
    for k in range(1,8):
        for e in range(4): a('v_fmac_f32 %s, %s, %s'%(vr(acc+e),vr(tk+k),vr(rg+4*k+e)))
        if k==1: a('v_permlane16_swap_b32 %s, %s'%(vr(Ls),vr(Tm)))
        if k==2:
            a('v_add_f32 %s, %s, %s'%(vr(Ls),vr(Ls),vr(Tm)))
            a('v_mov_b32 %s, %s'%(vr(Tm),vr(Ls)))
        if k==3: a('v_permlane32_swap_b32 %s, %s'%(vr(Ls),vr(Tm)))
        if k==4: a('v_add_f32 %s, %s, %s'%(vr(Ls),vr(Ls),vr(Tm)))
        if k==5: a('v_rcp_f32 %s, %s'%(vr(Ls),vr(Ls)))
    for e in range(4): a('v_add_f32_dpp %s, %s, %s row_ror:8%s'%(vr(acc+e),vr(acc+e),vr(acc+e),DP))
    for sw_ in ('v_permlane16_swap_b32','v_permlane32_swap_b32'):
        for e in range(4): a('v_mov_b32 %s, %s'%(vr(acc+4+e),vr(acc+e)))
        for e in range(4): a('%s %s, %s'%(sw_,vr(acc+e),vr(acc+4+e)))
        for e in range(4): a('v_add_f32 %s, %s, %s'%(vr(acc+e),vr(acc+e),vr(acc+4+e)))
    for e in range(4): a('v_mul_f32 %s, %s, %s'%(vr(acc+e),vr(acc+e),vr(Ls)))
    a('v_cvt_pk_bf16_f32 %s, %s, %s'%(vr(acc),vr(acc),vr(acc+1)))
    a('v_cvt_pk_bf16_f32 %s, %s, %s'%(vr(acc+1),vr(acc+2),vr(acc+3)))
    a('s_mov_b64 exec, 0xff')
    a('buffer_store_dwordx2 %s, %s, %s, s70 offen %s'%(vr(acc,2),vr(vDq),srd(sO),OPOL))
    a('L_fin:')
    if ST:
        a('s_mov_b64 exec, -1')
        a('s_waitcnt vmcnt(0)')
        stamp(11)
        a('s_getreg_b32 s70, hwreg(HW_REG_HW_ID)'); a('s_getreg_b32 s71, hwreg(HW_REG_XCC_ID, 0, 4)'); a('s_nop 1')
        a('v_writelane_b32 v%d, s70, 15'%vST); a('v_writelane_b32 v%d, s71, 9'%vST)
        a('s_lshl_b32 s70, s2, 3'); a('s_add_u32 s70, s70, s%d'%sw); a('s_lshl_b32 s70, s70, 6'); a('s_add_u32 s70, s70, 0x100000')
        a('v_and_b32 v1, 63, v0'); a('v_lshlrev_b32 v1, 2, v1')
        a('s_mov_b64 exec, 0xffff')
        a('buffer_store_dword v%d, v1, %s, s70 offen'%(vST,srd(sW)))
    a('L_end:')
    a('s_endpgm')
    lines,nn=fix_hazards(o)
    nvg=max((big+7)//8*8,136)
    lds=8*LDSW
    txt=HDR%(256,512,lds)+'\n'+'\n'.join(lines)+'\n'+FTR%(nvg,102,nvg)
    return txt, dict(nops=nn,vgpr=nvg,ninstr=len(lines))

if __name__=='__main__':
    kw={}
    for x in sys.argv[2:]:
        k,v=x.split('='); kw[k]=int(v) if v.lstrip('-').isdigit() else v
    t,info=gen(**kw)
    open(sys.argv[1],'w').write(t); print(info)
```
